```python
import torch

def _softmax(x, axis=-1):
    return torch.softmax(x, dim=axis)
def _gelu(x):
    return torch.nn.functional.gelu(x, approximate="tanh")
def _silu(x):
    return torch.nn.functional.silu(x)
def _sigmoid(x):
    return torch.sigmoid(x)
def _layernorm(x, axis=-1, eps=1e-5):
    m = x.mean(dim=axis, keepdim=True)
    v = x.var(dim=axis, keepdim=True, unbiased=False)
    return (x - m) / torch.sqrt(v + eps)
def _scatter_add(tgt, idx, src, axis=0):
    return tgt.clone().index_add_(axis, idx, src)
def _segment_sum(src, seg, n):
    out = torch.zeros((n,) + src.shape[1:], dtype=src.dtype)
    return out.index_add_(0, seg, src)
def _pad(x, pw):
    flat = tuple(v for pair in reversed(pw) for v in pair)
    return torch.nn.functional.pad(x, flat)

kernel_name = 'interleave_layers__mha_block_cached__swiglu_ffn__decode'

def setup_inputs():

    _w = (lambda a: (lambda t: t.to(torch.bfloat16) if t.is_floating_point() else t)(torch.as_tensor(a)))
    def _A_setup():
        B, Sq, D = 1, 1, 512
        H, Sk, Dh = 32, 4096, 128
        return {
            "x": _w((lambda *s: torch.randn(*s, dtype=torch.bfloat16) * 0.05)(B, Sq, D)),
            "k_cache": _w((lambda *s: torch.randn(*s, dtype=torch.bfloat16) * 1.6)(B, H, Sk, Dh)),
            "v_cache": _w((lambda *s: torch.randn(*s, dtype=torch.bfloat16) * 1.6)(B, H, Sk, Dh)),
            "wq": _w((lambda *s: torch.randn(*s, dtype=torch.bfloat16) * 1.6)(D, H * Dh) * (D ** -0.5)),
            "wo": _w((lambda *s: torch.randn(*s, dtype=torch.bfloat16) * 1.6)(H * Dh, D) * ((H * Dh) ** -0.5)),
        }
    _A_in = _A_setup()

    def _B_setup():
        B, S, D, F = 1, 1, 512, 1376
        return {
            "x": _w((lambda *s: torch.randn(*s, dtype=torch.bfloat16) * 0.05)(B, S, D)),
            "w_gate": _w((lambda *s: torch.randn(*s, dtype=torch.bfloat16) * 0.05)(D, F)),
            "w_up": _w((lambda *s: torch.randn(*s, dtype=torch.bfloat16) * 0.05)(D, F)),
            "w_down": _w((lambda *s: torch.randn(*s, dtype=torch.bfloat16) * 0.05)(F, D)),
        }
    _B_in = _B_setup()

    return {
        "A_x": _A_in["x"],
        "A_k_cache": _A_in["k_cache"],
        "A_v_cache": _A_in["v_cache"],
        "A_wq": _A_in["wq"],
        "A_wo": _A_in["wo"],
        "B_x": _B_in["x"],
        "B_w_gate": _B_in["w_gate"],
        "B_w_up": _B_in["w_up"],
        "B_w_down": _B_in["w_down"],
    }

def reference(A_x, A_k_cache, A_v_cache, A_wq, A_wo, B_x, B_w_gate, B_w_up, B_w_down):
    def _A_ref(x, k_cache, v_cache, wq, wo):
        B, Sq, D = x.shape
        H, Dh = 32, 128
        q = (lambda x, *d: x.permute(*d))((x @ wq).reshape(B, Sq, H, Dh), 0, 2, 1, 3)
        scores = torch.einsum("bhqd,bhkd->bhqk", q, k_cache) * (Dh ** -0.5)
        p = _softmax(scores, axis=-1)
        o = torch.einsum("bhqk,bhkd->bhqd", p, v_cache)
        return (lambda x, *d: x.permute(*d))(o, 0, 2, 1, 3).reshape(B, Sq, H * Dh) @ wo

    def _B_ref(x, w_gate, w_up, w_down):
        g = _silu(x @ w_gate)
        u = x @ w_up
        return (g * u) @ w_down

    x = A_x
    x = x + _A_ref(_layernorm(x, axis=-1), A_k_cache, A_v_cache, A_wq, A_wo)
    x = x + _B_ref(_layernorm(x, axis=-1), B_w_gate, B_w_up, B_w_down)
    x = x + _A_ref(_layernorm(x, axis=-1), A_k_cache, A_v_cache, A_wq, A_wo)
    x = x + _B_ref(_layernorm(x, axis=-1), B_w_gate, B_w_up, B_w_down)
    return x
```

```python
import re

TRANS = ("v_exp_f32", "v_log_f32", "v_rcp_f32", "v_rsq_f32", "v_sqrt_f32", "v_sin_f32", "v_cos_f32")
REG = re.compile(r"^-?\|?([vsa])(\d+)\|?$|^-?\|?([vsa])\[(\d+):(\d+)\]\|?$")


def regs_of(tok):
    tok = tok.strip()
    if tok == "vcc":
        return {("s", 106), ("s", 107)}
    if tok == "exec":
        return {("s", 126), ("s", 127)}
    m = REG.match(tok)
    if not m:
        return set()
    if m.group(1):
        return {(m.group(1), int(m.group(2)))}
    return {(m.group(3), i) for i in range(int(m.group(4)), int(m.group(5)) + 1)}


class Ins:
    def __init__(self, text):
        self.text = text
        self.label = text.endswith(":")
        self.op = "" if self.label else text.split()[0]
        self.pad = 0
        if self.label:
            self.kind = "label"
            return
        rest = text[len(self.op):].strip()
        parts = [p.strip() for p in re.split(r",(?![^\[]*\])", rest)] if rest else []
        ops = []
        for p in parts:
            ops.append(p.split()[0] if p else p)
        self.ops = ops
        op = self.op
        self.dpp = "_dpp" in op
        self.perm = op.startswith("v_permlane")
        self.trans = op.startswith(TRANS)
        self.dot = op.startswith("v_dot")
        self.wr = set()
        self.rd = set()
        self.wide_store = set()
        R = [regs_of(o) for o in ops]
        if op.startswith(("v_mfma", "v_smfmac")):
            self.kind = "mfma"
            self.wr = R[0]
            self.ab = R[1] | R[2]
            if op.startswith("v_smfmac"):
                self.ab |= R[3]
                self.c = R[0]
            else:
                self.c = R[3]
            self.rd = self.ab | self.c
        elif op.startswith("v_"):
            self.kind = "valu"
            if self.perm:
                self.wr = R[0] | R[1]
                self.rd = R[0] | R[1]
            else:
                self.wr = R[0]
                for r in R[1:]:
                    self.rd |= r
                if op.startswith(("v_fmac", "v_dot2c", "v_pk_fmac")) or self.dpp:
                    self.rd |= R[0]
                if op.startswith("v_cndmask") and len(ops) == 3:
                    self.rd |= regs_of("vcc")
            self.dpp_src = R[1] if self.dpp else set()
        elif op.startswith(("buffer_", "global_")):
            self.kind = "vmem"
            if "store" in op or ("atomic" in op):
                for r in R:
                    self.rd |= r
                if op.endswith(("x3", "x4")):
                    self.wide_store = R[0] if op.startswith("buffer_") else R[1]
            else:
                self.wr = R[0]
                for r in R[1:]:
                    self.rd |= r
        elif op.startswith("ds_"):
            self.kind = "ds"
            if "write" in op:
                for r in R:
                    self.rd |= r
            else:
                self.wr = R[0]
                for r in R[1:]:
                    self.rd |= r
        else:
            self.kind = "salu"
        self.branch = op.startswith(("s_cbranch", "s_branch"))
        self.states = 1
        if op == "s_nop":
            self.states = int(ops[0]) + 1


def need(p, c):
    n = 0
    V = lambda s: {x for x in s if x[0] in "va"}
    S = lambda s: {x for x in s if x[0] == "s"}
    if p.kind == "valu":
        pv, ps = V(p.wr), S(p.wr)
        if c.kind == "mfma" and pv & c.rd:
            n = max(n, 2)
        if c.kind == "valu":
            if c.dpp and pv & c.dpp_src:
                n = max(n, 2)
            if c.perm and pv & c.rd:
                n = max(n, 2)
            if c.op.startswith(("v_readlane", "v_readfirstlane")) and pv & c.rd:
                n = max(n, 1)
            if p.trans and pv & c.rd:
                n = max(n, 1)
            if ps & c.rd:
                n = max(n, 4 if c.op.startswith(("v_readlane", "v_writelane")) else 2)
            if p.dot and pv & (c.rd | c.wr):
                n = max(n, 3)
        if p.trans and c.kind in ("vmem", "ds") and pv & c.rd:
            n = max(n, 1)
        if c.kind == "vmem" and ps & c.rd:
            n = max(n, 5)
    if p.kind == "mfma":
        if c.kind == "mfma":
            if p.wr & c.ab:
                n = max(n, 8)
            if p.wr & c.c and p.wr != c.c:
                n = max(n, 6)
            if p.wr & c.c and p.op != c.op:
                n = max(n, 6)
            if p.wr & c.wr and not (p.wr & c.c):
                n = max(n, 6)
        elif c.kind in ("valu", "vmem", "ds"):
            if p.wr & (c.rd | c.wr):
                n = max(n, 8)
            if c.kind == "valu" and p.c & c.wr:
                n = max(n, 3)
    if p.kind == "vmem" and p.wide_store and c.kind in ("valu", "vmem", "ds", "mfma") and p.wide_store & c.wr:
        n = max(n, 2)
    return n


class Asm:
    def __init__(self):
        self.ins = []

    def __call__(self, text):
        for line in text.strip().split("\n"):
            line = line.split(";")[0].strip()
            if line:
                self.ins.append(Ins(line))

    def resolve(self, mfma_time=True):
        ins = self.ins
        labels = {x.text[:-1]: i for i, x in enumerate(ins) if x.label}
        preds = [[] for _ in ins]
        for i, x in enumerate(ins):
            if i + 1 < len(ins) and x.op not in ("s_branch", "s_endpgm"):
                preds[i + 1].append(i)
            if not x.label and x.branch:
                preds[labels[x.ops[0]]].append(i)
        LIMIT = 9
        total = 0

        def paths(i, acc, dist):
            if dist >= LIMIT or not preds[i]:
                yield acc
                return
            for p in preds[i]:
                x = ins[p]
                if x.label:
                    if len(acc) > 40:
                        yield acc
                    else:
                        yield from paths(p, acc + [p], dist)
                else:
                    yield from paths(p, acc + [p], dist + x.states + x.pad)

        for i, c in enumerate(ins):
            if c.label or c.kind == "salu":
                continue
            want = 0
            for path in paths(i, [], 0):
                seq = [ins[p] for p in reversed(path) if not ins[p].label]
                t = 0
                last_m = None
                times = []
                for x in seq:
                    t += x.pad
                    if mfma_time and x.kind == "mfma":
                        if last_m is not None:
                            t = max(t, last_m + 4)
                        last_m = t
                    times.append(t)
                    t += x.states
                for x, tx in zip(seq, times):
                    n = need(x, c)
                    if n:
                        want = max(want, n - (t - tx - 1))
            if want > 0:
                c.pad = want
                total += want
        return total

    def text(self):
        out = []
        for x in self.ins:
            if x.label:
                out.append(x.text)
                continue
            p = x.pad
            while p > 0:
                k = min(p, 8)
                out.append(f"    s_nop {k - 1}")
                p -= k
            out.append("    " + x.text)
        return "\n".join(out)
```

```python
import sys, os, struct, math
sys.path.insert(0, os.path.dirname(os.path.abspath(__file__)))
from asmlib import Asm

NAME = "interleave_layers__mha_block_cached__swiglu_ffn__decode"
KDIR = "cdna_kernels"

ACC, W, K, V = 32, 64, 128, 192
REG = 131072
STAT, COL = 65536, 98304
L_O, L_ML, L_FAST, L_Q, L_RES, L_SIZE = 0, 4096, 4160, 4352, 4608, 5632
R_K, R_V, R_X, R_WQ, R_WO, R_WG, R_WU, R_WD, R_OUT, R_DBG, R_WS = (f"s[{i}:{i+3}]" for i in range(8, 52, 4))
SEL = ("s62", "s63")
M_ALL, M_16, M_1, M_63 = "s[64:65]", "s[66:67]", "s[68:69]", "s[70:71]"
S_RETRY, S_FAST = "s72", "s73"
S_GAT, S_PUBD, S_PUBS, S_ROWD, S_ROWS, S_PUBC = "s74", "s75", "s76", "s77", "s78", "s79"
S_LAY, S_VT, S_WL, S_XO = "s80", "s81", "s82", "s83"
FULL = "row_mask:0xf bank_mask:0xf"
PROF_BASE = 0x200000


def f32(x):
    return "0x%08x" % struct.unpack("<I", struct.pack("<f", x))[0]


def vr(a, n):
    return f"v[{a}:{a+n-1}]"


DEFAULT = dict(prof=False, dry=True, fast=True, final_team=0)


def build(**kw):
    P = dict(DEFAULT)
    P.update(kw)
    a = Asm()
    uid = [0]

    def lab(s):
        uid[0] += 1
        return f"{s}_{uid[0]}"

    def ts(k):
        if P["prof"]:
            a(f"s_memrealtime s[{84+2*k}:{85+2*k}]")

    def flush(slot):
        if not P["prof"]:
            return
        a("s_waitcnt lgkmcnt(0)")
        for k in range(9):
            a(f"v_writelane_b32 v30, s{84+2*k}, {k}")
        a(f"v_writelane_b32 v30, {S_RETRY}, 9")
        a(f"v_writelane_b32 v30, {S_FAST}, 10")
        a("s_lshl_b32 s60, s4, 3")
        a("s_add_u32 s60, s60, s3")
        a("s_lshl_b32 s60, s60, 12")
        if slot == "lay":
            a(f"s_lshl_b32 s61, {S_LAY}, 10")
            a("s_add_u32 s60, s60, s61")
            a(f"s_add_u32 s60, s60, {PROF_BASE + 1024}")
        else:
            a(f"s_add_u32 s60, s60, {PROF_BASE}")
        a(f"buffer_store_dword v30, v25, {R_WS}, s60 offen")

    def barrier(dry_ok=True):
        if dry_ok and P["dry"]:
            l = lab("nb")
            a(f"s_cbranch_execz {l}")
            a("s_barrier")
            a(f"{l}:")
        else:
            a("s_barrier")

    def smf(d, A, B, idx):
        a(f"v_smfmac_f32_16x16x64_bf16 {vr(d,4)}, {vr(A,4)}, {vr(B,8)}, v{idx}")

    def retry_stub(name):
        a(f"s_branch {name}_pre")
        a(f"{name}_retry:")
        a(f"s_sub_u32 {S_RETRY}, {S_RETRY}, 1")
        a(f"s_cbranch_scc0 {name}_loop")
        a(f"s_mov_b32 {S_RETRY}, 0")
        a(f"s_branch {name}_ok")
        a(f"{name}_pre:")

    def check(name):
        a(f"s_cbranch_vccnz {name}_retry")
        a(f"{name}_ok:")

    def row_store(stores):
        if not P["fast"]:
            for s in stores:
                a(s + (" sc1" if s.startswith("buffer") else ""))
            return
        l0, l1 = lab("slow"), lab("sent")
        a(f"s_cbranch_scc0 {l0}")
        for s in stores:
            a(s)
        a(f"s_cbranch_execnz {l1}")
        a(f"{l0}:")
        for s in stores:
            a(s + (" sc1" if s.startswith("buffer") else ""))
        a(f"{l1}:")

    def k_loads():
        for T in range(4):
            hi, g1 = T >> 1, T & 1
            for e2 in range(2):
                for hh in range(2):
                    a(f"buffer_load_dwordx4 {vr(K+16*T+8*hh+4*e2,4)}, v30, {R_K}, s{52+4*hi+2*e2+g1} offen offset:{128*hh} nt")

    def v_load(i, S):
        hi, e2, g1, e0 = i >> 3, (i >> 2) & 1, (i >> 1) & 1, i & 1
        qi = i & 7
        d = V + 8 * qi + 4 if hi == 0 else S + 4 * qi
        a(f"buffer_load_dwordx4 {vr(d,4)}, v25, {R_V}, s{52+4*hi+2*e2+g1} offen offset:{1024*e0} nt")

    def k_swap(j):
        b = K + 8 * j
        for c in range(4):
            a(f"v_mov_b32 v{4+c}, v{b+c}")
        for c in range(4):
            a(f"v_mov_b32_dpp v{b+c}, v{b+4+c} row_ror:8 row_mask:0xf bank_mask:0xc")
        for c in range(4):
            a(f"v_mov_b32_dpp v{b+4+c}, v{4+c} row_ror:8 row_mask:0xf bank_mask:0x3")

    def quad_transpose(F, S, hi, e2, swap):
        raw = lambda e: (F + 8 * e + 4) if hi == 0 else S + 4 * e
        if swap:
            for e0 in range(2):
                for c in range(4):
                    a(f"v_permlane32_swap_b32 v{raw(4*e2+e0)+c}, v{raw(4*e2+2+e0)+c}")
        for c in range(4):
            for e1 in range(2):
                e = 4 * e2 + 2 * e1
                for jl in range(2):
                    a(f"v_perm_b32 v{F+8*(2*c+jl)+4*hi+2*e2+e1}, v{raw(e+1)+c}, v{raw(e)+c}, {SEL[jl]}")

    def pair_pos(G, u):
        if G == 8:
            return 56 + 2 * u
        mat, hi, e2 = G >> 2, (G >> 1) & 1, G & 1
        return W + 8 * (2 * u + mat) + 4 * hi + 2 * e2

    def pair_loads(ngroups, srd, off):
        last = None
        for G in range(ngroups):
            mat, hi, e2 = G >> 2, (G >> 1) & 1, G & 1
            for u in range(4):
                so, imm = off(mat, hi, 4 * e2 + u)
                if so != last:
                    a(f"s_mov_b32 s60, {so}")
                    last = so
                a(f"buffer_load_dwordx2 {vr(pair_pos(G+1,u),2)}, v3, {srd(mat)}, s60 offen offset:{imm} nt")

    def pair_transpose(ngroups, newer):
        for G in range(ngroups):
            a(f"s_waitcnt vmcnt({4*(ngroups-1-G)+newer})")
            for c in range(2):
                for v in range(2):
                    for jl in range(2):
                        a(f"v_perm_b32 v{pair_pos(G,2*c+jl)+v}, v{pair_pos(G+1,2*v+1)+c}, v{pair_pos(G+1,2*v)+c}, {SEL[jl]}")

    def zero2(regs):
        for r in regs:
            a(f"v_mov_b64 {vr(r,2)}, 0")

    def matvec8(A, stats):
        if stats:
            a(f"v_mfma_f32_16x16x32_bf16 v[4:7], {vr(A,4)}, {vr(A,4)}, 0")
            a(f"v_mfma_f32_16x16x32_bf16 v[12:15], {vr(A,4)}, v[20:23], 0")
        fill = []
        if stats:
            fill = [None, None, f"v_add_f32_dpp v5, v5, v4 row_shl:1 {FULL}", "v_add_f32 v4, v12, v13"]
        else:
            fill = [None] * 4
        fill += [f"v_add_f32 v{ACC+4*T}, v{ACC+4*T}, v{ACC+4*T+1}" for T in range(4)]
        for T in range(8):
            smf(ACC + 4 * T, A, W + 8 * T, 1)
            if fill[T]:
                a(fill[T])
        a("v_add_f32 v48, v48, v49")
        a("v_cvt_pk_bf16_f32 v32, v32, v36")
        a("v_add_f32 v52, v52, v53")
        a("v_cvt_pk_bf16_f32 v33, v40, v44")
        a("v_add_f32 v56, v56, v57")
        a("v_cvt_pk_bf16_f32 v34, v48, v52")
        a(f"s_mov_b64 exec, {M_16}")
        a("v_add_f32 v60, v60, v61")
        a("v_cvt_pk_bf16_f32 v35, v56, v60")

    def pub_stores():
        return [f"buffer_store_dwordx4 v[32:35], v25, {R_WS}, {S_PUBD} offen",
                f"s_mov_b64 exec, {M_1}",
                f"buffer_store_dwordx2 v[4:5], v25, {R_WS}, {S_PUBS} offen"]

    def spread_x():
        for i in range(1, 4):
            a(f"v_mov_b32_dpp v{8+i}, v8 row_shl:{2*i} {FULL}")
        a(f"ds_write_b32 v25, v8 offset:{L_RES}")

    def colsum_publish(delta):
        zero2(range(ACC, ACC + 32, 4))
        matvec8(20, False)
        a(f"s_add_u32 s60, {S_PUBD}, {delta*REG}")
        a(f"buffer_store_dwordx4 v[32:35], v25, {R_WS}, s60 offen sc1")
        a(f"s_mov_b64 exec, {M_ALL}")

    def residual():
        a(f"ds_read_b32 v12, v25 offset:{L_RES}")
        zero2(range(48, 64, 4))
        a("s_waitcnt lgkmcnt(0)")
        a("v_lshlrev_b32 v14, 16, v12")
        a("v_and_b32 v15, 0xffff0000, v12")
        a("v_mul_f32 v14, 0.5, v14")
        a("v_mul_f32 v15, 0.5, v15")

    def col_gather(name):
        a(f"{name}_loop:")
        for i in range(4):
            a(f"buffer_load_dwordx4 {vr(ACC+4*i,4)}, v25, {R_WS}, {S_GAT} offen offset:{1024*i} sc1")
        a("v_mov_b64 v[4:5], v[14:15]")
        a("s_waitcnt vmcnt(2)")
        smf(4, 16, 32, 24)
        a("s_waitcnt vmcnt(0)")
        smf(4, 16, 40, 24)
        zero2(range(32, 48, 4))
        a(f"v_add_f32_dpp v4, v4, v4 row_ror:8 {FULL}")
        a(f"v_add_f32_dpp v5, v5, v5 row_ror:8 {FULL}")
        a("v_cmp_u_f32 vcc, v4, v5")
        a("v_cvt_pk_bf16_f32 v8, v4, v5")
        check(name)

    def row_loads():
        a(f"buffer_load_dwordx2 v[8:9], v26, {R_WS}, {S_ROWS} offen sc1")
        a(f"buffer_load_dwordx4 v[32:35], v25, {R_WS}, {S_ROWD} offen sc1")
        a(f"buffer_load_dwordx4 v[36:39], v25, {R_WS}, {S_ROWD} offen offset:1024 sc1")

    def row_reduce(scale):
        smf(4, 16, 32, 24)
        for sh in (4, 2, 1):
            a(f"v_add_f32_dpp v8, v8, v8 row_ror:{sh} {FULL}")
            a(f"v_add_f32_dpp v9, v9, v9 row_ror:{sh} {FULL}")
        a(f"v_mul_f32 v8, {f32(1/512)}, v8")
        a(f"v_mul_f32 v9, {f32(1/512)}, v9")
        a("v_fma_f32 v9, -v8, v8, v9")
        a("v_add_f32_e64 v9, |v9|, s61")
        a("v_rsq_f32 v9, v9")
        a("v_fma_f32 v4, -v8, v28, v4")
        a("v_fma_f32 v5, -v8, v29, v5")
        if scale is not None:
            a(f"v_mul_f32 v9, {f32(scale)}, v9")
        a("v_mul_f32 v4, v4, v9")
        a("v_mul_f32 v5, v5, v9")
        a("v_cmp_u_f32 vcc, v4, v5")

    QS = 128 ** -0.5 * math.log2(math.e)

    def bump(regs):
        for r in regs:
            a(f"s_add_u32 {r}, {r}, {REG}")

    def next_layer(regs):
        bump(regs)
        a(f"s_mov_b32 {S_LAY}, 1")
        a(f"s_mov_b32 {S_VT}, 0")
        a(f"s_mov_b32 {S_WL}, 0")
        a("s_branch ATT")

    def set_masks(live):
        if live:
            a(f"s_mov_b64 {M_ALL}, -1")
            a(f"s_mov_b64 {M_16}, 0xffff")
            a(f"s_mov_b64 {M_1}, 1")
            a("s_mov_b32 s70, 0")
            a("s_brev_b32 s71, 1")
        else:
            for m in (M_ALL, M_16, M_1, M_63):
                a(f"s_mov_b64 {m}, 0")
        a(f"s_mov_b64 exec, {M_ALL}")

    a("s_cmp_ge_u32 s2, 0x100")
    a("s_cbranch_scc1 END")
    ts(0)
    a("""
    s_load_dwordx2 s[8:9], s[0:1], 8
    s_load_dwordx2 s[12:13], s[0:1], 16
    s_load_dwordx2 s[16:17], s[0:1], 0
    s_load_dwordx2 s[20:21], s[0:1], 24
    s_load_dwordx8 s[64:71], s[0:1], 32
    s_load_dwordx8 s[72:79], s[0:1], 64
    v_lshrrev_b32 v1, 6, v0
    v_and_b32 v3, 63, v0
    s_and_b32 s4, s2, 7
    s_lshl_b32 s4, s4, 5
    v_readfirstlane_b32 s3, v1
    s_lshr_b32 s5, s2, 3
    s_add_u32 s4, s4, s5
    s_lshr_b32 s5, s4, 3
    s_and_b32 s6, s4, 7
    s_and_b32 s7, s5, 3
    s_lshl_b32 s7, s7, 3
    s_lshr_b32 s60, s5, 2
    s_add_u32 s7, s7, s60
    v_and_b32 v4, 15, v0
    v_bfe_u32 v5, v0, 4, 2
    v_lshlrev_b32 v25, 4, v3
    v_and_b32 v6, 7, v0
    v_bfe_u32 v7, v0, 3, 1
    v_lshlrev_b32 v30, 8, v6
    v_lshl_add_u32 v30, v7, 6, v30
    v_lshl_add_u32 v30, v5, 4, v30
    s_lshl_b32 s52, s4, 17
    s_lshr_b32 s60, s3, 2
    s_lshl_b32 s60, s60, 16
    s_add_u32 s52, s52, s60
    s_and_b32 s60, s3, 3
    s_lshl_b32 s60, s60, 11
    s_add_u32 s52, s52, s60
    """)
    for i in range(1, 8):
        a(f"s_add_u32 s{52+i}, s52, {8192*i}")
    sizes = [1 << 25, 1 << 25, 1024, 1 << 22, 1 << 22, 512 * 2752, 512 * 2752, 1376 * 1024, 1024, 256,
             (PROF_BASE + (8 << 20)) if P["prof"] else (1 << 20)]
    for i, sz in enumerate(sizes):
        a(f"s_mov_b32 s{10+4*i}, {sz}")
        a(f"s_mov_b32 s{11+4*i}, 0x20000")
    a(f"""
    s_mov_b32 s62, 0x05040100
    s_mov_b32 s63, 0x07060302
    v_lshlrev_b32 v31, 4, v6
    v_lshl_add_u32 v31, v5, 2, v31
    v_and_b32 v8, 3, v0
    v_min_u32 v8, 1, v8
    v_mul_u32_u24 v1, 0xaaaa, v8
    v_or_b32 v1, 0x4444, v1
    v_lshlrev_b32 v8, 4, v8
    v_lshl_add_u32 v9, v5, 5, v8
    v_bfe_u32 v8, v0, 2, 1
    v_mul_u32_u24 v24, 0xaaaa, v8
    v_or_b32 v24, 0x4444, v24
    v_and_b32 v10, 1, v0
    v_lshlrev_b32 v8, 4, v10
    v_mov_b32 v11, 0x3f80
    v_lshlrev_b32 v8, v8, v11
    v_mul_lo_u32 v17, v8, v7
    v_sub_u32 v16, v8, v17
    v_mov_b32 v18, v16
    v_mov_b32 v19, v17
    v_mov_b32 v20, 0x3f803f80
    v_mov_b32 v21, v20
    v_mov_b32 v22, v20
    v_mov_b32 v23, v20
    v_lshl_add_u32 v26, v5, 1, v4
    v_and_b32 v26, 7, v26
    v_lshlrev_b32 v26, 7, v26
    v_lshrrev_b32 v27, 1, v4
    v_lshlrev_b32 v27, 5, v27
    v_lshl_add_u32 v27, v10, 3, v27
    v_bfe_u32 v12, v0, 4, 1
    v_bfe_u32 v13, v0, 5, 1
    v_lshl_add_u32 v27, v12, 4, v27
    v_lshl_add_u32 v27, v13, 2, v27
    s_lshl_b32 s60, s3, 9
    v_lshl_add_u32 v2, v4, 4, s60
    s_lshl_b32 s60, s3, 2
    s_add_u32 s60, s60, {L_ML}
    v_writelane_b32 v2, s60, 63
    v_add_u32 v0, {L_Q}, v9
    v_mov_b32 v28, 0
    v_mov_b32 v29, 0
    s_lshl_b32 {S_XO}, s6, 7
    s_waitcnt lgkmcnt(0)
    s_mov_b64 s[24:25], s[64:65]
    s_mov_b64 s[28:29], s[68:69]
    s_mov_b64 s[32:33], s[70:71]
    s_mov_b64 s[36:37], s[72:73]
    s_mov_b64 s[40:41], s[74:75]
    s_mov_b64 s[44:45], s[76:77]
    s_mov_b64 s[48:49], s[78:79]
    s_add_u32 s60, s3, 1
    s_lshr_b32 s60, s60, 1
    s_lshl_b32 s60, s60, 18
    s_lshl_b32 {S_PUBD}, s4, 8
    s_add_u32 {S_PUBD}, {S_PUBD}, s60
    s_lshl_b32 {S_ROWD}, s5, 11
    s_add_u32 {S_ROWD}, {S_ROWD}, s60
    s_add_u32 s60, s60, {STAT}
    s_lshl_b32 {S_PUBS}, s4, 7
    s_add_u32 {S_PUBS}, {S_PUBS}, s60
    s_lshl_b32 {S_ROWS}, s5, 10
    s_add_u32 {S_ROWS}, {S_ROWS}, s60
    s_and_b32 s60, s3, 2
    s_lshl_b32 s60, s60, 17
    s_lshl_b32 {S_GAT}, s6, 12
    s_add_u32 {S_GAT}, {S_GAT}, s60
    s_add_u32 {S_GAT}, {S_GAT}, {COL}
    s_lshl_b32 s60, s5, 7
    s_add_u32 {S_PUBC}, {S_GAT}, s60
    s_mov_b32 {S_RETRY}, 0x40000
    s_mov_b32 {S_FAST}, 0
    s_mov_b32 {S_LAY}, 0
    s_mov_b32 {S_VT}, 1
    s_cmp_lt_u32 s3, 3
    s_cselect_b32 {S_WL}, 1, 0
    """)
    set_masks(True)
    ts(1)
    a("s_cmp_eq_u32 s3, 3")
    a("s_cbranch_scc1 W3_PRE")

    k_loads()
    a("v_mov_b32 v14, v4")
    a("v_mov_b32 v15, v5")
    for i in range(16):
        v_load(i, W)
        if i >= 8:
            j = i - 8
            a(f"s_waitcnt vmcnt({16+i+1-4*((j>>1)+1)})")
            k_swap(j)
    ts(2)
    a("s_cmp_ge_u32 s3, 3")
    a("s_cbranch_scc1 PRE_DONE")
    a("s_cmp_eq_u32 s3, 0")
    a("s_cbranch_scc1 W0_SET")
    a("s_cmp_eq_u32 s3, 1")
    a("s_cbranch_scc1 W1_SET")
    a(f"""
    v_lshl_add_u32 v3, v12, 5, v13
    v_lshlrev_b32 v3, 10, v3
    v_lshlrev_b32 v20, 3, v14
    s_lshl_b32 s60, s7, 16
    s_add_u32 s60, s60, {S_XO}
    v_add3_u32 v3, v3, v20, s60
    s_branch PRE_DONE
    W1_SET:
    v_lshlrev_b32 v3, 1, v13
    v_lshl_add_u32 v3, v12, 5, v3
    s_lshl_b32 s60, s6, 6
    v_add_u32 v3, s60, v3
    v_mul_u32_u24 v3, 2752, v3
    s_lshl_b32 s60, s7, 7
    v_lshl_add_u32 v4, v14, 3, s60
    v_add_u32 v3, v3, v4
    v_cmp_lt_u32 vcc, 2751, v4
    v_bfrev_b32 v4, 1
    v_cndmask_b32 v3, v3, v4, vcc
    s_branch PRE_DONE
    W0_SET:
    v_lshlrev_b32 v20, 3, v14
    v_lshl_add_u32 v3, v15, 13, v20
    s_lshl_b32 s60, s5, 17
    s_add_u32 s60, s60, {S_XO}
    v_add_u32 v3, s60, v3
    v_lshl_add_u32 v20, v15, 1, v20
    v_lshlrev_b32 v16, 4, v14
    v_lshl_add_u32 v16, v15, 10, v16
    v_lshlrev_b32 v17, 3, v15
    v_add_u32 v17, {L_ML}, v17
    v_mov_b32 v18, 0
    v_bfe_u32 v4, v14, 1, 1
    v_mul_u32_u24 v24, 0xaaaa, v4
    v_or_b32 v24, 0x4444, v24
    v_lshrrev_b32 v5, 2, v14
    v_lshl_add_u32 v5, v5, 1, v10
    v_lshlrev_b32 v19, 8, v5
    v_lshl_add_u32 v19, v15, 5, v19
    v_lshl_add_u32 v19, v4, 4, v19
    """)
    if P["dry"]:
        set_masks(False)
        a("s_branch ATT")
        a("DRY_END:")
        set_masks(True)
    a("PRE_DONE:")
    ts(3)
    flush("pre")

    a("ATT:")
    a("s_waitcnt lgkmcnt(0)")
    barrier()
    ts(0)
    a("ds_read_b128 v[4:7], v0")
    a("ds_read_b128 v[8:11], v0 offset:128")
    zero2(range(48, 64, 4))
    for r in range(32, 48, 2):
        a(f"v_mov_b32 v{r}, 0")
    a("s_waitcnt lgkmcnt(0)")
    for T, hh in ((0, 0), (1, 0), (0, 1), (1, 1), (2, 0), (3, 0), (2, 1), (3, 1)):
        smf(48 + 4 * T, 4 + 4 * hh, K + 16 * T + 8 * hh, 1)
    a(f"""
    v_add_f32 v12, v48, v49
    v_add_f32 v13, v52, v53
    v_mov_b32 v48, 0
    v_mov_b32 v50, 0
    v_add_f32 v14, v56, v57
    v_mov_b32 v52, 0
    v_max3_f32 v4, v12, v13, v14
    v_mov_b32_dpp v12, v13 quad_perm:[0,1,2,3] row_mask:0x2 bank_mask:0xf
    v_add_f32 v15, v60, v61
    v_max_f32 v4, v4, v15
    v_mov_b32_dpp v12, v14 quad_perm:[0,1,2,3] row_mask:0x4 bank_mask:0xf
    v_mov_b32 v54, 0
    v_max_f32_dpp v4, v4, v4 row_ror:8 {FULL}
    v_mov_b32_dpp v12, v15 quad_perm:[0,1,2,3] row_mask:0x8 bank_mask:0xf
    v_mov_b32 v56, 0
    v_max_f32_dpp v4, v4, v4 row_ror:4 {FULL}
    v_mov_b32 v58, 0
    v_mov_b32 v60, 0
    v_max_f32_dpp v4, v4, v4 row_ror:2 {FULL}
    v_mov_b32 v62, 0
    s_cmp_eq_u32 {S_VT}, 0
    v_max_f32_dpp v4, v4, v4 row_ror:1 {FULL}
    v_sub_f32 v5, v12, v4
    v_exp_f32 v5, v5
    v_mov_b32_dpp v6, v5 row_shl:4 {FULL}
    v_cvt_pk_bf16_f32 v8, v5, v6
    v_add_f32_dpp v5, v5, v5 row_ror:8 {FULL}
    v_mov_b32_dpp v9, v8 row_shl:8 {FULL}
    v_mov_b32_dpp v10, v8 row_shl:1 {FULL}
    v_mov_b32_dpp v11, v8 row_shl:9 {FULL}
    v_add_f32_dpp v5, v5, v5 row_ror:4 {FULL}
    s_cbranch_scc0 VT
    PV:
    """)
    fill = [None, f"v_add_f32_dpp v5, v5, v5 row_ror:2 {FULL}", None, f"v_add_f32_dpp v5, v5, v5 row_ror:1 {FULL}",
            None, "v_add_f32_dpp v5, v5, v5 row_bcast:15 row_mask:0xa bank_mask:0xf",
            "v_add_f32 v32, v32, v34", "v_add_f32_dpp v5, v5, v5 row_bcast:31 row_mask:0xc bank_mask:0xf"]
    for j in range(8):
        smf(ACC + 4 * j, 8, V + 8 * j, 1)
        if fill[j]:
            a(fill[j])
    a(f"""
    v_add_f32 v33, v36, v38
    v_add_f32 v34, v40, v42
    v_add_f32 v35, v44, v46
    s_mov_b64 exec, {M_63}
    ds_write2_b32 v2, v4, v5 offset1:8
    s_mov_b64 exec, {M_16}
    ds_write_b128 v2, v[32:35]
    v_add_f32 v48, v48, v50
    v_add_f32 v49, v52, v54
    v_add_f32 v50, v56, v58
    v_add_f32 v51, v60, v62
    ds_write_b128 v2, v[48:51] offset:256
    s_mov_b64 exec, {M_ALL}
    s_cmp_eq_u32 {S_WL}, 1
    s_cbranch_scc1 WL
    B2:
    s_cmp_lg_u32 s3, 0
    s_waitcnt lgkmcnt(0)
    """)
    ts(1)
    barrier()
    a("s_cbranch_scc1 NOT0")

    ts(2)
    a(f"""
    ds_read_b128 v[4:7], v18 offset:{L_ML}
    ds_read_b128 v[8:11], v18 offset:{L_ML+16}
    ds_read2_b64 v[12:15], v17 offset1:4
    ds_read_b128 v[32:35], v16
    ds_read_b128 v[40:43], v16 offset:512
    ds_read_b128 v[36:39], v16 offset:256
    ds_read_b128 v[44:47], v16 offset:768
    s_cmp_eq_u32 {S_FAST}, 1
    s_waitcnt lgkmcnt({0 if P['prof'] else 4})
    v_max3_f32 v4, v4, v5, v6
    v_max3_f32 v8, v8, v9, v10
    v_max3_f32 v4, v4, v7, v11
    v_max_f32 v4, v4, v8
    v_sub_f32 v12, v12, v4
    v_sub_f32 v13, v13, v4
    v_exp_f32 v12, v12
    v_exp_f32 v13, v13
    v_mul_f32 v5, v14, v12
    s_waitcnt lgkmcnt(0)
    """)
    for r in (32, 34, 36, 38):
        a(f"v_pk_mul_f32 {vr(r,2)}, {vr(r,2)}, v[12:13] op_sel_hi:[1,0]")
    a("v_fmac_f32 v5, v15, v13")
    for r in (32, 36, 34, 38):
        a(f"v_pk_fma_f32 {vr(r,2)}, {vr(r+8,2)}, v[12:13], {vr(r,2)} op_sel:[0,1,0]")
    a(f"""
    v_add_f32_dpp v5, v5, v5 row_bcast:15 row_mask:0xa bank_mask:0xf
    v_permlane32_swap_b32 v32, v36
    v_permlane32_swap_b32 v33, v37
    v_permlane32_swap_b32 v34, v38
    v_permlane32_swap_b32 v35, v39
    v_pk_add_f32 v[32:33], v[32:33], v[36:37]
    v_pk_add_f32 v[34:35], v[34:35], v[38:39]
    v_add_f32_dpp v5, v5, v5 row_bcast:31 row_mask:0xc bank_mask:0xf
    v_permlane16_swap_b32 v32, v34
    v_permlane16_swap_b32 v33, v35
    v_pk_add_f32 v[32:33], v[32:33], v[34:35]
    v_cvt_pk_bf16_f32 v6, v32, v33
    """)
    row_store([f"buffer_store_dword v6, v27, {R_WS}, {S_PUBD} offen",
               f"s_mov_b64 exec, {M_63}",
               f"buffer_store_dwordx2 v[4:5], v18, {R_WS}, {S_PUBS} offen"])
    a(f"s_mov_b64 exec, {M_ALL}")
    ts(3)
    a(f"s_cmp_eq_u32 {S_WL}, 0")
    a("s_cbranch_scc1 G1_pre")
    pair_transpose(8, 2)
    retry_stub("G1")
    a("s_waitcnt vmcnt(0)")
    ts(4)
    a(f"""
    G1_loop:
    buffer_load_dwordx2 v[12:13], v26, {R_WS}, {S_ROWS} offen sc1
    buffer_load_dwordx4 v[4:7], v19, {R_WS}, {S_ROWD} offen sc1
    buffer_load_dwordx4 v[8:11], v19, {R_WS}, {S_ROWD} offen offset:128 sc1
    """)
    zero2(range(32, 48, 2))
    a("s_waitcnt vmcnt(0)")
    ts(5)
    fill = [f"v_max_f32_dpp v14, v12, v12 row_ror:4 {FULL}",
            f"v_max_f32_dpp v14, v14, v14 row_ror:2 {FULL}",
            f"v_max_f32_dpp v14, v14, v14 row_ror:1 {FULL}",
            "v_sub_f32 v12, v12, v14\nv_exp_f32 v12, v12",
            "v_mul_f32 v13, v13, v12",
            f"v_add_f32_dpp v13, v13, v13 row_ror:4 {FULL}",
            f"v_add_f32_dpp v13, v13, v13 row_ror:2 {FULL}",
            f"v_add_f32_dpp v13, v13, v13 row_ror:1 {FULL}"]
    for i, (j, hh) in enumerate(((0, 0), (2, 0), (0, 1), (2, 1), (1, 0), (3, 0), (1, 1), (3, 1))):
        smf(ACC + 4 * j, 4 + 4 * hh, W + 8 * (2 * j + hh), 24)
        a(fill[i])
    a(f"""
    v_rcp_f32 v13, v13
    v_pk_add_f32 v[32:33], v[32:33], v[34:35]
    v_mul_f32 v12, v12, v13
    v_pk_add_f32 v[40:41], v[40:41], v[42:43]
    v_pk_add_f32 v[36:37], v[36:37], v[38:39]
    v_mul_f32_dpp v32, v12, v32 row_newbcast:0 {FULL}
    v_mul_f32_dpp v40, v12, v40 row_newbcast:0 {FULL}
    v_pk_add_f32 v[44:45], v[44:45], v[46:47]
    v_fmac_f32_dpp v32, v12, v33 row_newbcast:1 {FULL}
    v_fmac_f32_dpp v40, v12, v41 row_newbcast:1 {FULL}
    v_mul_f32_dpp v36, v12, v36 row_newbcast:0 {FULL}
    v_mul_f32_dpp v44, v12, v44 row_newbcast:0 {FULL}
    v_fmac_f32_dpp v36, v12, v37 row_newbcast:1 {FULL}
    v_fmac_f32_dpp v44, v12, v45 row_newbcast:1 {FULL}
    v_permlane32_swap_b32 v32, v40
    v_add_f32 v32, v32, v40
    v_permlane32_swap_b32 v36, v44
    v_add_f32 v36, v36, v44
    v_permlane16_swap_b32 v32, v36
    v_add_f32 v32, v32, v36
    v_cmp_u_f32 vcc, v32, v32
    v_cvt_pk_bf16_f32 v4, v32, v32
    """)
    check("G1")
    a(f"buffer_store_short v4, v20, {R_WS}, {S_PUBC} offen sc1")
    ts(6)
    a("s_waitcnt vmcnt(0)")
    barrier()
    ts(7)
    a("s_cbranch_execnz END0")

    a("ST1:")
    a(f"s_cmp_eq_u32 {S_WL}, 0")
    a("s_cbranch_scc1 ST1_B")
    pair_transpose(8, 0)
    colsum_publish(5)
    a("ST1_B:")
    residual()
    ts(2)
    retry_stub("G2")
    barrier()
    ts(3)
    col_gather("G2")
    ts(4)
    a(f"s_cmp_eq_u32 {S_FAST}, 1")
    spread_x()
    matvec8(8, True)
    row_store(pub_stores())
    a(f"s_mov_b64 exec, {M_ALL}")
    ts(5)
    a("s_waitcnt vmcnt(0) lgkmcnt(0)")
    barrier()
    ts(6)
    a("s_cbranch_execnz END1")

    a("ST2:")
    a(f"s_cmp_eq_u32 {S_WL}, 0")
    a("s_cbranch_scc1 ST2_B")
    pair_transpose(4, 0)
    a(f"s_add_u32 s60, {S_ROWD}, {5*REG}")
    retry_stub("CG")
    barrier()
    a(f"""
    CG_loop:
    buffer_load_dwordx4 v[32:35], v25, {R_WS}, s60 offen sc1
    buffer_load_dwordx4 v[36:39], v25, {R_WS}, s60 offen offset:1024 sc1
    v_mov_b64 v[4:5], 0
    s_waitcnt vmcnt(0)
    """)
    smf(4, 16, 32, 24)
    a("v_cmp_u_f32 vcc, v4, v5")
    a("v_mov_b64 v[28:29], v[4:5]")
    check("CG")
    a("s_branch ST2_C")
    a("ST2_B:")
    barrier(False)
    a("ST2_C:")
    for r in range(48, 64, 2):
        a(f"v_mov_b32 v{r}, 0")
    a(f"s_mov_b32 s61, {f32(1e-5)}")
    ts(2)
    retry_stub("G3")
    barrier()
    ts(3)
    a("G3_loop:")
    row_loads()
    a("v_mov_b64 v[4:5], 0")
    a("s_waitcnt vmcnt(0)")
    ts(4)
    row_reduce(None)
    a(f"v_mul_f32 v6, {f32(-math.log2(math.e))}, v4")
    check("G3")
    a(f"""
    v_exp_f32 v6, v6
    v_mul_f32 v4, v4, v5
    v_add_f32 v6, 1.0, v6
    v_rcp_f32 v6, v6
    v_mul_f32 v4, v4, v6
    v_mov_b32_dpp v5, v4 row_shl:1 {FULL}
    v_cvt_pk_bf16_f32 v8, v4, v5
    v_mov_b32_dpp v9, v8 row_shl:4 {FULL}
    v_mov_b32_dpp v10, v8 row_shl:8 {FULL}
    v_mov_b32_dpp v11, v8 row_shl:12 {FULL}
    """)
    for j in range(4):
        smf(48 + 4 * j, 8, W + 16 * j, 1)
    a(f"""
    v_add_f32 v48, v48, v50
    v_add_f32 v52, v52, v54
    v_cvt_pk_bf16_f32 v4, v48, v52
    s_mov_b64 exec, {M_16}
    v_add_f32 v56, v56, v58
    v_add_f32 v60, v60, v62
    v_cvt_pk_bf16_f32 v5, v56, v60
    buffer_store_dwordx2 v[4:5], v20, {R_WS}, {S_PUBC} offen sc1
    s_mov_b64 exec, {M_ALL}
    """)
    ts(5)
    a("s_waitcnt vmcnt(0)")
    barrier()
    ts(6)
    a("s_cbranch_execnz END2")

    a("ST3:")
    barrier()
    barrier()
    residual()
    a(f"s_mov_b32 s61, {f32(1e-5)}")
    ts(2)
    retry_stub("G4")
    barrier()
    ts(3)
    col_gather("G4")
    ts(4)
    a(f"s_cmp_eq_u32 {S_LAY}, 1")
    a("s_cbranch_scc1 FINAL")
    a(f"s_cmp_eq_u32 {S_FAST}, 1")
    spread_x()
    matvec8(8, True)
    row_store(pub_stores())
    a(f"s_mov_b64 exec, {M_ALL}")
    ts(5)
    retry_stub("G5")
    a("s_waitcnt vmcnt(0)")
    ts(6)
    a("G5_loop:")
    row_loads()
    a("v_mov_b64 v[4:5], 0")
    a("s_waitcnt vmcnt(0)")
    ts(7)
    row_reduce(QS)
    a("v_cvt_pk_bf16_f32 v4, v4, v5")
    check("G5")
    a(f"ds_write_b32 v27, v4 offset:{L_Q}")
    ts(8)
    if P["dry"]:
        a("s_cbranch_execz FINAL")
    flush("lay")
    bump([S_GAT])
    a(f"s_mov_b32 {S_LAY}, 1")
    a("s_branch ATT")
    a("FINAL:")
    a(f"buffer_store_dword v8, v31, {R_OUT}, {S_XO} offen")
    if P["dry"]:
        a("s_cbranch_execz DRY_END")
    if P["prof"]:
        a("s_waitcnt vmcnt(0)")
        ts(5)
        flush("lay")
    a("s_endpgm")

    a("NOT0:")
    a("s_cmp_eq_u32 s3, 1")
    a("s_cbranch_scc1 ST1")
    a("s_cmp_eq_u32 s3, 2")
    a("s_cbranch_scc1 ST2")
    a(f"s_cmp_eq_u32 {S_LAY}, 0")
    a("s_cbranch_scc1 NOT0_A")
    a("s_cmp_eq_u32 s3, 3")
    a(f"s_cselect_b32 s60, s5, 63")
    a(f"s_cmp_eq_u32 s60, {P['final_team']}")
    a("s_cbranch_scc1 ST3")
    flush("lay")
    a("s_endpgm")
    a("NOT0_A:")
    a("s_cmp_eq_u32 s3, 3")
    a("s_cbranch_scc1 ST3")
    a("s_barrier")
    a("END0:")
    flush("lay")
    a(f"s_cmp_eq_u32 {S_LAY}, 1")
    a("s_cbranch_scc1 END")
    a("s_barrier")
    a("s_barrier")
    next_layer([S_PUBD, S_PUBS, S_ROWD, S_ROWS, S_PUBC])
    a("END1:")
    flush("lay")
    a(f"s_cmp_eq_u32 {S_LAY}, 1")
    a("s_cbranch_scc1 END")
    a("s_barrier")
    next_layer([S_GAT, S_PUBD, S_PUBS])
    a("END2:")
    flush("lay")
    a(f"s_cmp_eq_u32 {S_LAY}, 1")
    a("s_cbranch_scc1 END")
    next_layer([S_ROWD, S_ROWS, S_PUBC])

    a("VT:")
    for gi in range(4):
        a(f"s_waitcnt vmcnt({12-4*gi})")
        quad_transpose(V, W, gi >> 1, gi & 1, True)
    a("s_branch PV")

    a("WL:")
    a(f"v_mov_b32 v4, {L_FAST}")
    a("ds_read_b32 v4, v4")
    a("s_waitcnt lgkmcnt(0)")
    a(f"v_readfirstlane_b32 {S_FAST}, v4")
    a("s_cmp_eq_u32 s3, 1")
    a("s_cbranch_scc1 WL1")
    a("s_cmp_eq_u32 s3, 2")
    a("s_cbranch_scc1 WL2")
    pair_loads(8, lambda m: R_WO, lambda m, hi, e: ((64 * m + 32 * hi + (e & 4)) * 1024, (e & 3) * 1024))
    a("s_cbranch_execnz B2")
    a("WL1:")
    pair_loads(8, lambda m: (R_WG, R_WU)[m],
               lambda m, hi, e: ((16 * (e >> 2) + 8 * ((e >> 1) & 1) + 4 * hi) * 2752, (e & 1) * 2752))
    a("s_cbranch_execnz B2")
    a("WL2:")
    pair_loads(4, lambda m: R_WD, lambda m, hi, e: (e * 4096, hi * 2048))
    a("s_branch B2")

    a("W3_PRE:")
    a(f"""
    v_mov_b32 v8, -1
    v_mov_b32 v9, -1
    v_mov_b32 v10, -1
    v_mov_b32 v11, -1
    v_lshlrev_b32 v5, 17, v5
    v_lshl_add_u32 v7, v4, 4, v5
    v_lshl_add_u32 v5, v4, 3, v5
    v_lshlrev_b32 v6, 17, v6
    s_sub_u32 s60, {S_PUBD}, {4*REG}
    buffer_store_dwordx4 v[8:11], v7, {R_WS}, s60 offen sc1
    buffer_store_dwordx4 v[8:11], v7, {R_WS}, {S_PUBD} offen sc1
    s_sub_u32 s60, {S_PUBC}, {2*REG}
    buffer_store_dwordx2 v[8:9], v5, {R_WS}, s60 offen sc1
    s_sub_u32 s60, {S_PUBS}, {4*REG}
    s_mov_b64 exec, 0xff
    buffer_store_dwordx2 v[8:9], v6, {R_WS}, s60 offen sc1
    s_mov_b64 exec, -1
    buffer_load_dword v15, v31, {R_X}, {S_XO} offen
    v_lshlrev_b32 v3, 1, v13
    v_lshl_add_u32 v3, v12, 5, v3
    v_lshlrev_b32 v3, 13, v3
    v_lshl_add_u32 v3, v4, 4, v3
    s_lshl_b32 s60, s6, 19
    s_lshl_b32 s61, s5, 8
    s_add_u32 s60, s60, s61
    v_add_u32 v3, s60, v3
    """)
    for hi in range(2):
        for e in range(8):
            so = (16 * (e >> 2) + 8 * ((e >> 1) & 1) + 4 * hi + (e & 1)) * 8192
            d = W + 8 * e + 4 if hi == 0 else ACC + 4 * e
            a(f"s_mov_b32 s60, {so}")
            a(f"buffer_load_dwordx4 {vr(d,4)}, v3, {R_WQ}, s60 offen nt")
    a(f"""
    s_getreg_b32 s61, hwreg(HW_REG_XCC_ID)
    s_and_b32 s61, s61, 15
    s_or_b32 s61, s61, 0x80
    v_mov_b32 v4, s61
    s_mul_i32 {S_FAST}, s61, 0x01010101
    s_mov_b32 {S_VT}, 0
    s_mov_b64 exec, 1
    s_waitcnt vmcnt(16)
    buffer_store_byte v4, v25, {R_DBG}, s4 offen sc1
    s_mov_b64 exec, -1
    v_mov_b32 v8, v15
    v_lshrrev_b32 v3, 2, v25
    """)
    ts(2)
    spread_x()
    for gi in range(4):
        a(f"s_waitcnt vmcnt({13-4*gi})")
        quad_transpose(W, ACC, gi >> 1, gi & 1, False)
    zero2(range(ACC, ACC + 32, 4))
    matvec8(8, True)
    for s in pub_stores():
        a(s + (" sc1" if s.startswith("buffer") else ""))
    a("s_mov_b64 exec, -1")
    colsum_publish(2)
    ts(4)
    a(f"buffer_load_dword v4, v3, {R_DBG}, 0 offen sc1")
    k_loads()
    a("s_waitcnt vmcnt(16)")
    a("s_branch FL_chk")
    a("FL_retry:")
    a(f"s_sub_u32 {S_RETRY}, {S_RETRY}, 1")
    a("s_cbranch_scc1 FL_out")
    a(f"buffer_load_dword v4, v3, {R_DBG}, 0 offen sc1")
    a("s_waitcnt vmcnt(0)")
    a("FL_chk:")
    a("v_and_b32 v5, 0x80808080, v4")
    a("v_cmp_ne_u32 vcc, 0x80808080, v5")
    a("s_cbranch_vccnz FL_retry")
    a("s_branch FL_ok")
    a("FL_out:")
    a(f"s_mov_b32 {S_RETRY}, 0")
    a("FL_ok:")
    ts(5)
    a(f"""
    s_add_u32 s60, {S_ROWD}, {2*REG}
    buffer_load_dwordx4 v[40:43], v25, {R_WS}, s60 offen sc1
    buffer_load_dwordx4 v[44:47], v25, {R_WS}, s60 offen offset:1024 sc1
    """)
    row_loads()
    for i in range(8):
        v_load(i, ACC)
    a(f"""
    v_cmp_eq_u32 vcc, {S_FAST}, v4
    s_lshl_b32 s61, s5, 1
    s_lshr_b64 vcc, vcc, s61
    s_and_b32 s61, vcc_lo, 3
    s_cmp_eq_u32 s61, 3
    s_cselect_b32 {S_FAST}, 1, 0
    v_mov_b32 v4, {S_FAST}
    v_mov_b32 v5, {L_FAST}
    ds_write_b32 v5, v4
    s_mov_b32 s61, {f32(1e-5)}
    s_waitcnt vmcnt(8)
    s_branch G0_go
    G0_retry:
    s_sub_u32 {S_RETRY}, {S_RETRY}, 1
    s_cbranch_scc0 G0_loop
    s_mov_b32 {S_RETRY}, 0
    s_branch G0_ok
    G0_loop:
    buffer_load_dwordx4 v[40:43], v25, {R_WS}, s60 offen sc1
    buffer_load_dwordx4 v[44:47], v25, {R_WS}, s60 offen offset:1024 sc1
    """)
    row_loads()
    a("s_waitcnt vmcnt(0)")
    a("G0_go:")
    a("v_mov_b64 v[12:13], 0")
    a("v_mov_b64 v[4:5], 0")
    smf(12, 16, 40, 24)
    a("v_mov_b64 v[28:29], v[12:13]")
    row_reduce(QS)
    a("v_cvt_pk_bf16_f32 v4, v4, v5")
    check("G0")
    a(f"ds_write_b32 v27, v4 offset:{L_Q}")
    ts(6)
    for i in range(8, 16):
        v_load(i, ACC)
    bump([S_PUBD, S_PUBS, S_ROWD, S_ROWS])
    a("s_waitcnt lgkmcnt(0)")
    for j in range(8):
        k_swap(j)
    for gi in range(4):
        a(f"s_waitcnt vmcnt({12-4*gi})")
        quad_transpose(V, ACC, gi >> 1, gi & 1, True)
    a("s_branch PRE_DONE")
    a("END:")

    pads = a.resolve()
    ref = open(f"{KDIR}/{NAME}.s.ref").read().split("\n")
    head = [l for l in ref[:ref.index(".text")] if not l.startswith("; @launch") and not l.startswith(".amdgcn")]
    tail = ref[ref.index("s_endpgm"):]
    out = head + [f"; @launch grid=(256,1,1) block=(512,1,1) lds={L_SIZE}",
                  '.amdgcn_target "amdgcn-amd-amdhsa--gfx950"', ".text", f".globl {NAME}_kernel", ".p2align 8",
                  f".type {NAME}_kernel,@function", f"{NAME}_kernel:", a.text()] + tail
    return "\n".join(out), pads, len(a.ins)


if __name__ == "__main__":
    kw = {}
    dst = f"{KDIR}/{NAME}.s"
    for x in sys.argv[1:]:
        k, v = x.split("=")
        if k == "out":
            dst = v
        else:
            kw[k] = eval(v)
    txt, pads, n = build(**kw)
    open(dst, "w").write(txt)
    print(f"wrote {dst}: {n} lines, {pads} pad states")
```

```python
import sys, os, struct, math
sys.path.insert(0, os.path.dirname(os.path.abspath(__file__)))
from asmlib import Asm

NAME = "interleave_layers__mha_block_cached__swiglu_ffn__decode"
KDIR = "cdna_kernels"

ACC, W, K, V = 32, 64, 128, 192
REG = 131072
STAT, COL = 65536, 98304
L_O, L_ML, L_FAST, L_Q, L_RES, L_SIZE = 0, 4096, 4160, 4352, 4608, 5632
R_K, R_V, R_X, R_WQ, R_WO, R_WG, R_WU, R_WD, R_OUT, R_DBG, R_WS = (f"s[{i}:{i+3}]" for i in range(8, 52, 4))
SEL = ("s62", "s63")
M_ALL, M_16, M_1, M_63 = "s[64:65]", "s[66:67]", "s[68:69]", "s[70:71]"
S_RETRY, S_FAST = "s72", "s73"
S_GAT, S_PUBD, S_PUBS, S_ROWD, S_ROWS, S_PUBC = "s74", "s75", "s76", "s77", "s78", "s79"
S_LAY, S_VT, S_WL, S_XO = "s80", "s81", "s82", "s83"
FULL = "row_mask:0xf bank_mask:0xf"
PROF_BASE = 0x200000


def f32(x):
    return "0x%08x" % struct.unpack("<I", struct.pack("<f", x))[0]


def vr(a, n):
    return f"v[{a}:{a+n-1}]"


DEFAULT = dict(prof=False, dry=True, fast=True, final_team=0, pf=True)


def build(**kw):
    P = dict(DEFAULT)
    P.update(kw)
    a = Asm()
    uid = [0]

    def lab(s):
        uid[0] += 1
        return f"{s}_{uid[0]}"

    def ts(k):
        if P["prof"]:
            a(f"s_memrealtime s[{84+2*k}:{85+2*k}]")

    def flush(slot):
        if not P["prof"]:
            return
        a("s_waitcnt lgkmcnt(0)")
        for k in range(9):
            a(f"v_writelane_b32 v30, s{84+2*k}, {k}")
        a(f"v_writelane_b32 v30, {S_RETRY}, 9")
        a(f"v_writelane_b32 v30, {S_FAST}, 10")
        a("s_lshl_b32 s60, s4, 3")
        a("s_add_u32 s60, s60, s3")
        a("s_lshl_b32 s60, s60, 12")
        if slot == "lay":
            a(f"s_lshl_b32 s61, {S_LAY}, 10")
            a("s_add_u32 s60, s60, s61")
            a(f"s_add_u32 s60, s60, {PROF_BASE + 1024}")
        else:
            a(f"s_add_u32 s60, s60, {PROF_BASE}")
        a(f"buffer_store_dword v30, v25, {R_WS}, s60 offen")

    def barrier(dry_ok=True):
        if dry_ok and P["dry"]:
            l = lab("nb")
            a(f"s_cbranch_execz {l}")
            a("s_barrier")
            a(f"{l}:")
        else:
            a("s_barrier")

    def smf(d, A, B, idx):
        a(f"v_smfmac_f32_16x16x64_bf16 {vr(d,4)}, {vr(A,4)}, {vr(B,8)}, v{idx}")

    def retry_stub(name):
        a(f"s_branch {name}_pre")
        a(f"{name}_retry:")
        a(f"s_sub_u32 {S_RETRY}, {S_RETRY}, 1")
        a(f"s_cbranch_scc0 {name}_loop")
        a(f"s_mov_b32 {S_RETRY}, 0")
        a(f"s_branch {name}_ok")
        a(f"{name}_pre:")

    def check(name):
        a(f"s_cbranch_vccnz {name}_retry")
        a(f"{name}_ok:")

    def row_store(stores):
        if not P["fast"]:
            for s in stores:
                a(s + (" sc1" if s.startswith("buffer") else ""))
            return
        l0, l1 = lab("slow"), lab("sent")
        a(f"s_cbranch_scc0 {l0}")
        for s in stores:
            a(s)
        a(f"s_cbranch_execnz {l1}")
        a(f"{l0}:")
        for s in stores:
            a(s + (" sc1" if s.startswith("buffer") else ""))
        a(f"{l1}:")

    def k_loads():
        for T in range(4):
            hi, g1 = T >> 1, T & 1
            for e2 in range(2):
                for hh in range(2):
                    a(f"buffer_load_dwordx4 {vr(K+16*T+8*hh+4*e2,4)}, v30, {R_K}, s{52+4*hi+2*e2+g1} offen offset:{128*hh} nt")

    def v_load(i, S):
        hi, e2, g1, e0 = i >> 3, (i >> 2) & 1, (i >> 1) & 1, i & 1
        qi = i & 7
        d = V + 8 * qi + 4 if hi == 0 else S + 4 * qi
        a(f"buffer_load_dwordx4 {vr(d,4)}, v25, {R_V}, s{52+4*hi+2*e2+g1} offen offset:{1024*e0} nt")

    def k_swap(j):
        b = K + 8 * j
        for c in range(4):
            a(f"v_mov_b32 v{4+c}, v{b+c}")
        for c in range(4):
            a(f"v_mov_b32_dpp v{b+c}, v{b+4+c} row_ror:8 row_mask:0xf bank_mask:0xc")
        for c in range(4):
            a(f"v_mov_b32_dpp v{b+4+c}, v{4+c} row_ror:8 row_mask:0xf bank_mask:0x3")

    def quad_transpose(F, S, hi, e2, swap):
        raw = lambda e: (F + 8 * e + 4) if hi == 0 else S + 4 * e
        if swap:
            for e0 in range(2):
                for c in range(4):
                    a(f"v_permlane32_swap_b32 v{raw(4*e2+e0)+c}, v{raw(4*e2+2+e0)+c}")
        for c in range(4):
            for e1 in range(2):
                e = 4 * e2 + 2 * e1
                for jl in range(2):
                    a(f"v_perm_b32 v{F+8*(2*c+jl)+4*hi+2*e2+e1}, v{raw(e+1)+c}, v{raw(e)+c}, {SEL[jl]}")

    def pair_pos(G, u):
        if G == 8:
            return 56 + 2 * u
        mat, hi, e2 = G >> 2, (G >> 1) & 1, G & 1
        return W + 8 * (2 * u + mat) + 4 * hi + 2 * e2

    def pair_loads(ngroups, srd, off):
        last = None
        for G in range(ngroups):
            mat, hi, e2 = G >> 2, (G >> 1) & 1, G & 1
            for u in range(4):
                so, imm = off(mat, hi, 4 * e2 + u)
                if so != last:
                    a(f"s_mov_b32 s60, {so}")
                    last = so
                a(f"buffer_load_dwordx2 {vr(pair_pos(G+1,u),2)}, v3, {srd(mat)}, s60 offen offset:{imm} nt")

    def pair_transpose(ngroups, newer):
        for G in range(ngroups):
            a(f"s_waitcnt vmcnt({4*(ngroups-1-G)+newer})")
            for c in range(2):
                for v in range(2):
                    for jl in range(2):
                        a(f"v_perm_b32 v{pair_pos(G,2*c+jl)+v}, v{pair_pos(G+1,2*v+1)+c}, v{pair_pos(G+1,2*v)+c}, {SEL[jl]}")

    def zero2(regs):
        for r in regs:
            a(f"v_mov_b64 {vr(r,2)}, 0")

    def matvec8(A, stats):
        if stats:
            a(f"v_mfma_f32_16x16x32_bf16 v[4:7], {vr(A,4)}, {vr(A,4)}, 0")
            a(f"v_mfma_f32_16x16x32_bf16 v[12:15], {vr(A,4)}, v[20:23], 0")
        fill = []
        if stats:
            fill = [None, None, f"v_add_f32_dpp v5, v5, v4 row_shl:1 {FULL}", "v_add_f32 v4, v12, v13"]
        else:
            fill = [None] * 4
        fill += [f"v_add_f32 v{ACC+4*T}, v{ACC+4*T}, v{ACC+4*T+1}" for T in range(4)]
        for T in range(8):
            smf(ACC + 4 * T, A, W + 8 * T, 1)
            if fill[T]:
                a(fill[T])
        a("v_add_f32 v48, v48, v49")
        a("v_cvt_pk_bf16_f32 v32, v32, v36")
        a("v_add_f32 v52, v52, v53")
        a("v_cvt_pk_bf16_f32 v33, v40, v44")
        a("v_add_f32 v56, v56, v57")
        a("v_cvt_pk_bf16_f32 v34, v48, v52")
        a(f"s_mov_b64 exec, {M_16}")
        a("v_add_f32 v60, v60, v61")
        a("v_cvt_pk_bf16_f32 v35, v56, v60")

    def pub_stores():
        return [f"buffer_store_dwordx4 v[32:35], v25, {R_WS}, {S_PUBD} offen",
                f"s_mov_b64 exec, {M_1}",
                f"buffer_store_dwordx2 v[4:5], v25, {R_WS}, {S_PUBS} offen"]

    def spread_x():
        for i in range(1, 4):
            a(f"v_mov_b32_dpp v{8+i}, v8 row_shl:{2*i} {FULL}")
        a(f"ds_write_b32 v25, v8 offset:{L_RES}")

    def colsum_publish(delta):
        zero2(range(ACC, ACC + 32, 4))
        matvec8(20, False)
        a(f"s_add_u32 s60, {S_PUBD}, {delta*REG}")
        a(f"buffer_store_dwordx4 v[32:35], v25, {R_WS}, s60 offen sc1")
        a(f"s_mov_b64 exec, {M_ALL}")

    def residual():
        a(f"ds_read_b32 v12, v25 offset:{L_RES}")
        zero2(range(48, 64, 4))
        a("s_waitcnt lgkmcnt(0)")
        a("v_lshlrev_b32 v14, 16, v12")
        a("v_and_b32 v15, 0xffff0000, v12")
        a("v_mul_f32 v14, 0.5, v14")
        a("v_mul_f32 v15, 0.5, v15")

    def col_gather(name):
        a(f"{name}_loop:")
        for i in range(4):
            a(f"buffer_load_dwordx4 {vr(ACC+4*i,4)}, v25, {R_WS}, {S_GAT} offen offset:{1024*i} sc1")
        a("v_mov_b64 v[4:5], v[14:15]")
        a("s_waitcnt vmcnt(2)")
        smf(4, 16, 32, 24)
        a("s_waitcnt vmcnt(0)")
        smf(4, 16, 40, 24)
        zero2(range(32, 48, 4))
        a(f"v_add_f32_dpp v4, v4, v4 row_ror:8 {FULL}")
        a(f"v_add_f32_dpp v5, v5, v5 row_ror:8 {FULL}")
        a("v_cmp_u_f32 vcc, v4, v5")
        a("v_cvt_pk_bf16_f32 v8, v4, v5")
        check(name)

    def row_loads():
        a(f"buffer_load_dwordx2 v[8:9], v26, {R_WS}, {S_ROWS} offen sc1")
        a(f"buffer_load_dwordx4 v[32:35], v25, {R_WS}, {S_ROWD} offen sc1")
        a(f"buffer_load_dwordx4 v[36:39], v25, {R_WS}, {S_ROWD} offen offset:1024 sc1")

    def row_reduce(scale):
        smf(4, 16, 32, 24)
        for sh in (4, 2, 1):
            a(f"v_add_f32_dpp v8, v8, v8 row_ror:{sh} {FULL}")
            a(f"v_add_f32_dpp v9, v9, v9 row_ror:{sh} {FULL}")
        a(f"v_mul_f32 v8, {f32(1/512)}, v8")
        a(f"v_mul_f32 v9, {f32(1/512)}, v9")
        a("v_fma_f32 v9, -v8, v8, v9")
        a("v_add_f32_e64 v9, |v9|, s61")
        a("v_rsq_f32 v9, v9")
        a("v_fma_f32 v4, -v8, v28, v4")
        a("v_fma_f32 v5, -v8, v29, v5")
        if scale is not None:
            a(f"v_mul_f32 v9, {f32(scale)}, v9")
        a("v_mul_f32 v4, v4, v9")
        a("v_mul_f32 v5, v5, v9")
        a("v_cmp_u_f32 vcc, v4, v5")

    QS = 128 ** -0.5 * math.log2(math.e)

    def bump(regs):
        for r in regs:
            a(f"s_add_u32 {r}, {r}, {REG}")

    def next_layer(regs):
        bump(regs)
        a(f"s_mov_b32 {S_LAY}, 1")
        a(f"s_mov_b32 {S_VT}, 0")
        a(f"s_mov_b32 {S_WL}, 0")
        a("s_branch ATT")

    def set_masks(live):
        if live:
            a(f"s_mov_b64 {M_ALL}, -1")
            a(f"s_mov_b64 {M_16}, 0xffff")
            a(f"s_mov_b64 {M_1}, 1")
            a("s_mov_b32 s70, 0")
            a("s_brev_b32 s71, 1")
        else:
            for m in (M_ALL, M_16, M_1, M_63):
                a(f"s_mov_b64 {m}, 0")
        a(f"s_mov_b64 exec, {M_ALL}")

    a("s_cmp_ge_u32 s2, 0x100")
    a("s_cbranch_scc1 END")
    ts(0)
    if P["pf"]:
        a("""
        s_getpc_b64 s[60:61]
        PCREF:
        v_lshlrev_b32 v4, 6, v0
        v_min_u32 v4, END-PCREF, v4
        v_mov_b32 v5, s61
        v_add_co_u32 v4, vcc, s60, v4
        v_addc_co_u32 v5, vcc, 0, v5, vcc
        global_load_dword v128, v[4:5], off
        """)
    a("""
    s_load_dwordx2 s[8:9], s[0:1], 8
    s_load_dwordx2 s[12:13], s[0:1], 16
    s_load_dwordx2 s[16:17], s[0:1], 0
    s_load_dwordx2 s[20:21], s[0:1], 24
    s_load_dwordx8 s[64:71], s[0:1], 32
    s_load_dwordx8 s[72:79], s[0:1], 64
    v_lshrrev_b32 v1, 6, v0
    v_and_b32 v3, 63, v0
    s_and_b32 s4, s2, 7
    s_lshl_b32 s4, s4, 5
    v_readfirstlane_b32 s3, v1
    s_lshr_b32 s5, s2, 3
    s_add_u32 s4, s4, s5
    s_lshr_b32 s5, s4, 3
    s_and_b32 s6, s4, 7
    s_and_b32 s7, s5, 3
    s_lshl_b32 s7, s7, 3
    s_lshr_b32 s60, s5, 2
    s_add_u32 s7, s7, s60
    v_and_b32 v4, 15, v0
    v_bfe_u32 v5, v0, 4, 2
    v_lshlrev_b32 v25, 4, v3
    v_and_b32 v6, 7, v0
    v_bfe_u32 v7, v0, 3, 1
    v_lshlrev_b32 v30, 8, v6
    v_lshl_add_u32 v30, v7, 6, v30
    v_lshl_add_u32 v30, v5, 4, v30
    s_lshl_b32 s52, s4, 17
    s_lshr_b32 s60, s3, 2
    s_lshl_b32 s60, s60, 16
    s_add_u32 s52, s52, s60
    s_and_b32 s60, s3, 3
    s_lshl_b32 s60, s60, 11
    s_add_u32 s52, s52, s60
    """)
    for i in range(1, 8):
        a(f"s_add_u32 s{52+i}, s52, {8192*i}")
    sizes = [1 << 25, 1 << 25, 1024, 1 << 22, 1 << 22, 512 * 2752, 512 * 2752, 1376 * 1024, 1024, 256,
             (PROF_BASE + (8 << 20)) if P["prof"] else (1 << 20)]
    for i, sz in enumerate(sizes):
        a(f"s_mov_b32 s{10+4*i}, {sz}")
        a(f"s_mov_b32 s{11+4*i}, 0x20000")
    a(f"""
    s_mov_b32 s62, 0x05040100
    s_mov_b32 s63, 0x07060302
    v_lshlrev_b32 v31, 4, v6
    v_lshl_add_u32 v31, v5, 2, v31
    v_and_b32 v8, 3, v0
    v_min_u32 v8, 1, v8
    v_mul_u32_u24 v1, 0xaaaa, v8
    v_or_b32 v1, 0x4444, v1
    v_lshlrev_b32 v8, 4, v8
    v_lshl_add_u32 v9, v5, 5, v8
    v_bfe_u32 v8, v0, 2, 1
    v_mul_u32_u24 v24, 0xaaaa, v8
    v_or_b32 v24, 0x4444, v24
    v_and_b32 v10, 1, v0
    v_lshlrev_b32 v8, 4, v10
    v_mov_b32 v11, 0x3f80
    v_lshlrev_b32 v8, v8, v11
    v_mul_lo_u32 v17, v8, v7
    v_sub_u32 v16, v8, v17
    v_mov_b32 v18, v16
    v_mov_b32 v19, v17
    v_mov_b32 v20, 0x3f803f80
    v_mov_b32 v21, v20
    v_mov_b32 v22, v20
    v_mov_b32 v23, v20
    v_lshl_add_u32 v26, v5, 1, v4
    v_and_b32 v26, 7, v26
    v_lshlrev_b32 v26, 7, v26
    v_lshrrev_b32 v27, 1, v4
    v_lshlrev_b32 v27, 5, v27
    v_lshl_add_u32 v27, v10, 3, v27
    v_bfe_u32 v12, v0, 4, 1
    v_bfe_u32 v13, v0, 5, 1
    v_lshl_add_u32 v27, v12, 4, v27
    v_lshl_add_u32 v27, v13, 2, v27
    s_lshl_b32 s60, s3, 9
    v_lshl_add_u32 v2, v4, 4, s60
    s_lshl_b32 s60, s3, 2
    s_add_u32 s60, s60, {L_ML}
    v_writelane_b32 v2, s60, 63
    v_add_u32 v0, {L_Q}, v9
    v_mov_b32 v28, 0
    v_mov_b32 v29, 0
    s_lshl_b32 {S_XO}, s6, 7
    s_waitcnt lgkmcnt(0)
    s_mov_b64 s[24:25], s[64:65]
    s_mov_b64 s[28:29], s[68:69]
    s_mov_b64 s[32:33], s[70:71]
    s_mov_b64 s[36:37], s[72:73]
    s_mov_b64 s[40:41], s[74:75]
    s_mov_b64 s[44:45], s[76:77]
    s_mov_b64 s[48:49], s[78:79]
    s_add_u32 s60, s3, 1
    s_lshr_b32 s60, s60, 1
    s_lshl_b32 s60, s60, 18
    s_lshl_b32 {S_PUBD}, s4, 8
    s_add_u32 {S_PUBD}, {S_PUBD}, s60
    s_lshl_b32 {S_ROWD}, s5, 11
    s_add_u32 {S_ROWD}, {S_ROWD}, s60
    s_add_u32 s60, s60, {STAT}
    s_lshl_b32 {S_PUBS}, s4, 7
    s_add_u32 {S_PUBS}, {S_PUBS}, s60
    s_lshl_b32 {S_ROWS}, s5, 10
    s_add_u32 {S_ROWS}, {S_ROWS}, s60
    s_and_b32 s60, s3, 2
    s_lshl_b32 s60, s60, 17
    s_lshl_b32 {S_GAT}, s6, 12
    s_add_u32 {S_GAT}, {S_GAT}, s60
    s_add_u32 {S_GAT}, {S_GAT}, {COL}
    s_lshl_b32 s60, s5, 7
    s_add_u32 {S_PUBC}, {S_GAT}, s60
    s_mov_b32 {S_RETRY}, 0x40000
    s_mov_b32 {S_FAST}, 0
    s_mov_b32 {S_LAY}, 0
    s_mov_b32 {S_VT}, 1
    s_cmp_lt_u32 s3, 3
    s_cselect_b32 {S_WL}, 1, 0
    """)
    set_masks(True)
    ts(1)
    a("s_cmp_eq_u32 s3, 3")
    a("s_cbranch_scc1 W3_PRE")

    k_loads()
    a("v_mov_b32 v14, v4")
    a("v_mov_b32 v15, v5")
    for i in range(16):
        v_load(i, W)
        if i >= 8:
            j = i - 8
            a(f"s_waitcnt vmcnt({16+i+1-4*((j>>1)+1)})")
            k_swap(j)
    ts(2)
    a("s_cmp_ge_u32 s3, 3")
    a("s_cbranch_scc1 PRE_DONE")
    a("s_cmp_eq_u32 s3, 0")
    a("s_cbranch_scc1 W0_SET")
    a("s_cmp_eq_u32 s3, 1")
    a("s_cbranch_scc1 W1_SET")
    a(f"""
    v_lshl_add_u32 v3, v12, 5, v13
    v_lshlrev_b32 v3, 10, v3
    v_lshlrev_b32 v20, 3, v14
    s_lshl_b32 s60, s7, 16
    s_add_u32 s60, s60, {S_XO}
    v_add3_u32 v3, v3, v20, s60
    s_branch PRE_DONE
    W1_SET:
    v_lshlrev_b32 v3, 1, v13
    v_lshl_add_u32 v3, v12, 5, v3
    s_lshl_b32 s60, s6, 6
    v_add_u32 v3, s60, v3
    v_mul_u32_u24 v3, 2752, v3
    s_lshl_b32 s60, s7, 7
    v_lshl_add_u32 v4, v14, 3, s60
    v_add_u32 v3, v3, v4
    v_cmp_lt_u32 vcc, 2751, v4
    v_bfrev_b32 v4, 1
    v_cndmask_b32 v3, v3, v4, vcc
    s_branch PRE_DONE
    W0_SET:
    v_lshlrev_b32 v20, 3, v14
    v_lshl_add_u32 v3, v15, 13, v20
    s_lshl_b32 s60, s5, 17
    s_add_u32 s60, s60, {S_XO}
    v_add_u32 v3, s60, v3
    v_lshl_add_u32 v20, v15, 1, v20
    v_lshlrev_b32 v16, 4, v14
    v_lshl_add_u32 v16, v15, 10, v16
    v_lshlrev_b32 v17, 3, v15
    v_add_u32 v17, {L_ML}, v17
    v_mov_b32 v18, 0
    v_bfe_u32 v4, v14, 1, 1
    v_mul_u32_u24 v24, 0xaaaa, v4
    v_or_b32 v24, 0x4444, v24
    v_lshrrev_b32 v5, 2, v14
    v_lshl_add_u32 v5, v5, 1, v10
    v_lshlrev_b32 v19, 8, v5
    v_lshl_add_u32 v19, v15, 5, v19
    v_lshl_add_u32 v19, v4, 4, v19
    """)
    if P["dry"]:
        set_masks(False)
        a("s_branch ATT")
        a("DRY_END:")
        set_masks(True)
    a("PRE_DONE:")
    ts(3)
    flush("pre")

    a("ATT:")
    a("s_waitcnt lgkmcnt(0)")
    barrier()
    ts(0)
    a("ds_read_b128 v[4:7], v0")
    a("ds_read_b128 v[8:11], v0 offset:128")
    zero2(range(48, 64, 4))
    for r in range(32, 48, 2):
        a(f"v_mov_b32 v{r}, 0")
    a("s_waitcnt lgkmcnt(0)")
    for T, hh in ((0, 0), (1, 0), (0, 1), (1, 1), (2, 0), (3, 0), (2, 1), (3, 1)):
        smf(48 + 4 * T, 4 + 4 * hh, K + 16 * T + 8 * hh, 1)
    a(f"""
    v_add_f32 v12, v48, v49
    v_add_f32 v13, v52, v53
    v_mov_b32 v48, 0
    v_mov_b32 v50, 0
    v_add_f32 v14, v56, v57
    v_mov_b32 v52, 0
    v_max3_f32 v4, v12, v13, v14
    v_mov_b32_dpp v12, v13 quad_perm:[0,1,2,3] row_mask:0x2 bank_mask:0xf
    v_add_f32 v15, v60, v61
    v_max_f32 v4, v4, v15
    v_mov_b32_dpp v12, v14 quad_perm:[0,1,2,3] row_mask:0x4 bank_mask:0xf
    v_mov_b32 v54, 0
    v_max_f32_dpp v4, v4, v4 row_ror:8 {FULL}
    v_mov_b32_dpp v12, v15 quad_perm:[0,1,2,3] row_mask:0x8 bank_mask:0xf
    v_mov_b32 v56, 0
    v_max_f32_dpp v4, v4, v4 row_ror:4 {FULL}
    v_mov_b32 v58, 0
    v_mov_b32 v60, 0
    v_max_f32_dpp v4, v4, v4 row_ror:2 {FULL}
    v_mov_b32 v62, 0
    s_cmp_eq_u32 {S_VT}, 0
    v_max_f32_dpp v4, v4, v4 row_ror:1 {FULL}
    v_sub_f32 v5, v12, v4
    v_exp_f32 v5, v5
    v_mov_b32_dpp v6, v5 row_shl:4 {FULL}
    v_cvt_pk_bf16_f32 v8, v5, v6
    v_add_f32_dpp v5, v5, v5 row_ror:8 {FULL}
    v_mov_b32_dpp v9, v8 row_shl:8 {FULL}
    v_mov_b32_dpp v10, v8 row_shl:1 {FULL}
    v_mov_b32_dpp v11, v8 row_shl:9 {FULL}
    v_add_f32_dpp v5, v5, v5 row_ror:4 {FULL}
    s_cbranch_scc0 VT
    PV:
    """)
    fill = [None, f"v_add_f32_dpp v5, v5, v5 row_ror:2 {FULL}", None, f"v_add_f32_dpp v5, v5, v5 row_ror:1 {FULL}",
            None, "v_add_f32_dpp v5, v5, v5 row_bcast:15 row_mask:0xa bank_mask:0xf",
            "v_add_f32 v32, v32, v34", "v_add_f32_dpp v5, v5, v5 row_bcast:31 row_mask:0xc bank_mask:0xf"]
    for j in range(8):
        smf(ACC + 4 * j, 8, V + 8 * j, 1)
        if fill[j]:
            a(fill[j])
    a(f"""
    v_add_f32 v33, v36, v38
    v_add_f32 v34, v40, v42
    v_add_f32 v35, v44, v46
    s_mov_b64 exec, {M_63}
    ds_write2_b32 v2, v4, v5 offset1:8
    s_mov_b64 exec, {M_16}
    ds_write_b128 v2, v[32:35]
    v_add_f32 v48, v48, v50
    v_add_f32 v49, v52, v54
    v_add_f32 v50, v56, v58
    v_add_f32 v51, v60, v62
    ds_write_b128 v2, v[48:51] offset:256
    s_mov_b64 exec, {M_ALL}
    s_cmp_eq_u32 {S_WL}, 1
    s_cbranch_scc1 WL
    B2:
    s_cmp_lg_u32 s3, 0
    s_waitcnt lgkmcnt(0)
    """)
    ts(1)
    barrier()
    a("s_cbranch_scc1 NOT0")

    ts(2)
    a(f"""
    ds_read_b128 v[4:7], v18 offset:{L_ML}
    ds_read_b128 v[8:11], v18 offset:{L_ML+16}
    ds_read2_b64 v[12:15], v17 offset1:4
    ds_read_b128 v[32:35], v16
    ds_read_b128 v[40:43], v16 offset:512
    ds_read_b128 v[36:39], v16 offset:256
    ds_read_b128 v[44:47], v16 offset:768
    s_cmp_eq_u32 {S_FAST}, 1
    s_waitcnt lgkmcnt({0 if P['prof'] else 4})
    v_max3_f32 v4, v4, v5, v6
    v_max3_f32 v8, v8, v9, v10
    v_max3_f32 v4, v4, v7, v11
    v_max_f32 v4, v4, v8
    v_sub_f32 v12, v12, v4
    v_sub_f32 v13, v13, v4
    v_exp_f32 v12, v12
    v_exp_f32 v13, v13
    v_mul_f32 v5, v14, v12
    s_waitcnt lgkmcnt(0)
    """)
    for r in (32, 34, 36, 38):
        a(f"v_pk_mul_f32 {vr(r,2)}, {vr(r,2)}, v[12:13] op_sel_hi:[1,0]")
    a("v_fmac_f32 v5, v15, v13")
    for r in (32, 36, 34, 38):
        a(f"v_pk_fma_f32 {vr(r,2)}, {vr(r+8,2)}, v[12:13], {vr(r,2)} op_sel:[0,1,0]")
    a(f"""
    v_add_f32_dpp v5, v5, v5 row_bcast:15 row_mask:0xa bank_mask:0xf
    v_permlane32_swap_b32 v32, v36
    v_permlane32_swap_b32 v33, v37
    v_permlane32_swap_b32 v34, v38
    v_permlane32_swap_b32 v35, v39
    v_pk_add_f32 v[32:33], v[32:33], v[36:37]
    v_pk_add_f32 v[34:35], v[34:35], v[38:39]
    v_add_f32_dpp v5, v5, v5 row_bcast:31 row_mask:0xc bank_mask:0xf
    v_permlane16_swap_b32 v32, v34
    v_permlane16_swap_b32 v33, v35
    v_pk_add_f32 v[32:33], v[32:33], v[34:35]
    v_cvt_pk_bf16_f32 v6, v32, v33
    """)
    row_store([f"buffer_store_dword v6, v27, {R_WS}, {S_PUBD} offen",
               f"s_mov_b64 exec, {M_63}",
               f"buffer_store_dwordx2 v[4:5], v18, {R_WS}, {S_PUBS} offen"])
    a(f"s_mov_b64 exec, {M_ALL}")
    ts(3)
    a(f"s_cmp_eq_u32 {S_WL}, 0")
    a("s_cbranch_scc1 G1_pre")
    pair_transpose(8, 2)
    retry_stub("G1")
    a("s_waitcnt vmcnt(0)")
    ts(4)
    a(f"""
    G1_loop:
    buffer_load_dwordx2 v[12:13], v26, {R_WS}, {S_ROWS} offen sc1
    buffer_load_dwordx4 v[4:7], v19, {R_WS}, {S_ROWD} offen sc1
    buffer_load_dwordx4 v[8:11], v19, {R_WS}, {S_ROWD} offen offset:128 sc1
    """)
    zero2(range(32, 48, 2))
    a("s_waitcnt vmcnt(0)")
    ts(5)
    fill = [f"v_max_f32_dpp v14, v12, v12 row_ror:4 {FULL}",
            f"v_max_f32_dpp v14, v14, v14 row_ror:2 {FULL}",
            f"v_max_f32_dpp v14, v14, v14 row_ror:1 {FULL}",
            "v_sub_f32 v12, v12, v14\nv_exp_f32 v12, v12",
            "v_mul_f32 v13, v13, v12",
            f"v_add_f32_dpp v13, v13, v13 row_ror:4 {FULL}",
            f"v_add_f32_dpp v13, v13, v13 row_ror:2 {FULL}",
            f"v_add_f32_dpp v13, v13, v13 row_ror:1 {FULL}"]
    for i, (j, hh) in enumerate(((0, 0), (2, 0), (0, 1), (2, 1), (1, 0), (3, 0), (1, 1), (3, 1))):
        smf(ACC + 4 * j, 4 + 4 * hh, W + 8 * (2 * j + hh), 24)
        a(fill[i])
    a(f"""
    v_rcp_f32 v13, v13
    v_pk_add_f32 v[32:33], v[32:33], v[34:35]
    v_mul_f32 v12, v12, v13
    v_pk_add_f32 v[40:41], v[40:41], v[42:43]
    v_pk_add_f32 v[36:37], v[36:37], v[38:39]
    v_mul_f32_dpp v32, v12, v32 row_newbcast:0 {FULL}
    v_mul_f32_dpp v40, v12, v40 row_newbcast:0 {FULL}
    v_pk_add_f32 v[44:45], v[44:45], v[46:47]
    v_fmac_f32_dpp v32, v12, v33 row_newbcast:1 {FULL}
    v_fmac_f32_dpp v40, v12, v41 row_newbcast:1 {FULL}
    v_mul_f32_dpp v36, v12, v36 row_newbcast:0 {FULL}
    v_mul_f32_dpp v44, v12, v44 row_newbcast:0 {FULL}
    v_fmac_f32_dpp v36, v12, v37 row_newbcast:1 {FULL}
    v_fmac_f32_dpp v44, v12, v45 row_newbcast:1 {FULL}
    v_permlane32_swap_b32 v32, v40
    v_add_f32 v32, v32, v40
    v_permlane32_swap_b32 v36, v44
    v_add_f32 v36, v36, v44
    v_permlane16_swap_b32 v32, v36
    v_add_f32 v32, v32, v36
    v_cmp_u_f32 vcc, v32, v32
    v_cvt_pk_bf16_f32 v4, v32, v32
    """)
    check("G1")
    a(f"buffer_store_short v4, v20, {R_WS}, {S_PUBC} offen sc1")
    ts(6)
    a("s_waitcnt vmcnt(0)")
    barrier()
    ts(7)
    a("s_cbranch_execnz END0")

    a("ST1:")
    a(f"s_cmp_eq_u32 {S_WL}, 0")
    a("s_cbranch_scc1 ST1_B")
    pair_transpose(8, 0)
    colsum_publish(5)
    a("ST1_B:")
    residual()
    ts(2)
    retry_stub("G2")
    barrier()
    ts(3)
    col_gather("G2")
    ts(4)
    a(f"s_cmp_eq_u32 {S_FAST}, 1")
    spread_x()
    matvec8(8, True)
    row_store(pub_stores())
    a(f"s_mov_b64 exec, {M_ALL}")
    ts(5)
    a("s_waitcnt vmcnt(0) lgkmcnt(0)")
    barrier()
    ts(6)
    a("s_cbranch_execnz END1")

    a("ST2:")
    a(f"s_cmp_eq_u32 {S_WL}, 0")
    a("s_cbranch_scc1 ST2_B")
    pair_transpose(4, 0)
    a(f"s_add_u32 s60, {S_ROWD}, {5*REG}")
    retry_stub("CG")
    barrier()
    a(f"""
    CG_loop:
    buffer_load_dwordx4 v[32:35], v25, {R_WS}, s60 offen sc1
    buffer_load_dwordx4 v[36:39], v25, {R_WS}, s60 offen offset:1024 sc1
    v_mov_b64 v[4:5], 0
    s_waitcnt vmcnt(0)
    """)
    smf(4, 16, 32, 24)
    a("v_cmp_u_f32 vcc, v4, v5")
    a("v_mov_b64 v[28:29], v[4:5]")
    check("CG")
    a("s_branch ST2_C")
    a("ST2_B:")
    barrier(False)
    a("ST2_C:")
    for r in range(48, 64, 2):
        a(f"v_mov_b32 v{r}, 0")
    a(f"s_mov_b32 s61, {f32(1e-5)}")
    ts(2)
    retry_stub("G3")
    barrier()
    ts(3)
    a("G3_loop:")
    row_loads()
    a("v_mov_b64 v[4:5], 0")
    a("s_waitcnt vmcnt(0)")
    ts(4)
    row_reduce(None)
    a(f"v_mul_f32 v6, {f32(-math.log2(math.e))}, v4")
    check("G3")
    a(f"""
    v_exp_f32 v6, v6
    v_mul_f32 v4, v4, v5
    v_add_f32 v6, 1.0, v6
    v_rcp_f32 v6, v6
    v_mul_f32 v4, v4, v6
    v_mov_b32_dpp v5, v4 row_shl:1 {FULL}
    v_cvt_pk_bf16_f32 v8, v4, v5
    v_mov_b32_dpp v9, v8 row_shl:4 {FULL}
    v_mov_b32_dpp v10, v8 row_shl:8 {FULL}
    v_mov_b32_dpp v11, v8 row_shl:12 {FULL}
    """)
    for j in range(4):
        smf(48 + 4 * j, 8, W + 16 * j, 1)
    a(f"""
    v_add_f32 v48, v48, v50
    v_add_f32 v52, v52, v54
    v_cvt_pk_bf16_f32 v4, v48, v52
    s_mov_b64 exec, {M_16}
    v_add_f32 v56, v56, v58
    v_add_f32 v60, v60, v62
    v_cvt_pk_bf16_f32 v5, v56, v60
    buffer_store_dwordx2 v[4:5], v20, {R_WS}, {S_PUBC} offen sc1
    s_mov_b64 exec, {M_ALL}
    """)
    ts(5)
    a("s_waitcnt vmcnt(0)")
    barrier()
    ts(6)
    a("s_cbranch_execnz END2")

    a("ST3:")
    barrier()
    barrier()
    residual()
    a(f"s_mov_b32 s61, {f32(1e-5)}")
    ts(2)
    retry_stub("G4")
    barrier()
    ts(3)
    col_gather("G4")
    ts(4)
    a(f"s_cmp_eq_u32 {S_LAY}, 1")
    a("s_cbranch_scc1 FINAL")
    a(f"s_cmp_eq_u32 {S_FAST}, 1")
    spread_x()
    matvec8(8, True)
    row_store(pub_stores())
    a(f"s_mov_b64 exec, {M_ALL}")
    ts(5)
    retry_stub("G5")
    a("s_waitcnt vmcnt(0)")
    ts(6)
    a("G5_loop:")
    row_loads()
    a("v_mov_b64 v[4:5], 0")
    a("s_waitcnt vmcnt(0)")
    ts(7)
    row_reduce(QS)
    a("v_cvt_pk_bf16_f32 v4, v4, v5")
    check("G5")
    a(f"ds_write_b32 v27, v4 offset:{L_Q}")
    ts(8)
    if P["dry"]:
        a("s_cbranch_execz FINAL")
    flush("lay")
    bump([S_GAT])
    a(f"s_mov_b32 {S_LAY}, 1")
    a("s_branch ATT")
    a("FINAL:")
    a(f"buffer_store_dword v8, v31, {R_OUT}, {S_XO} offen")
    if P["dry"]:
        a("s_cbranch_execz DRY_END")
    if P["prof"]:
        a("s_waitcnt vmcnt(0)")
        ts(5)
        flush("lay")
    a("s_endpgm")

    a("NOT0:")
    a("s_cmp_eq_u32 s3, 1")
    a("s_cbranch_scc1 ST1")
    a("s_cmp_eq_u32 s3, 2")
    a("s_cbranch_scc1 ST2")
    a(f"s_cmp_eq_u32 {S_LAY}, 0")
    a("s_cbranch_scc1 NOT0_A")
    a("s_cmp_eq_u32 s3, 3")
    a(f"s_cselect_b32 s60, s5, 63")
    a(f"s_cmp_eq_u32 s60, {P['final_team']}")
    a("s_cbranch_scc1 ST3")
    flush("lay")
    a("s_endpgm")
    a("NOT0_A:")
    a("s_cmp_eq_u32 s3, 3")
    a("s_cbranch_scc1 ST3")
    a("s_barrier")
    a("END0:")
    flush("lay")
    a(f"s_cmp_eq_u32 {S_LAY}, 1")
    a("s_cbranch_scc1 END")
    a("s_barrier")
    a("s_barrier")
    next_layer([S_PUBD, S_PUBS, S_ROWD, S_ROWS, S_PUBC])
    a("END1:")
    flush("lay")
    a(f"s_cmp_eq_u32 {S_LAY}, 1")
    a("s_cbranch_scc1 END")
    a("s_barrier")
    next_layer([S_GAT, S_PUBD, S_PUBS])
    a("END2:")
    flush("lay")
    a(f"s_cmp_eq_u32 {S_LAY}, 1")
    a("s_cbranch_scc1 END")
    next_layer([S_ROWD, S_ROWS, S_PUBC])

    a("VT:")
    for gi in range(4):
        a(f"s_waitcnt vmcnt({12-4*gi})")
        quad_transpose(V, W, gi >> 1, gi & 1, True)
    a("s_branch PV")

    a("WL:")
    a(f"v_mov_b32 v4, {L_FAST}")
    a("ds_read_b32 v4, v4")
    a("s_waitcnt lgkmcnt(0)")
    a(f"v_readfirstlane_b32 {S_FAST}, v4")
    a("s_cmp_eq_u32 s3, 1")
    a("s_cbranch_scc1 WL1")
    a("s_cmp_eq_u32 s3, 2")
    a("s_cbranch_scc1 WL2")
    pair_loads(8, lambda m: R_WO, lambda m, hi, e: ((64 * m + 32 * hi + (e & 4)) * 1024, (e & 3) * 1024))
    a("s_cbranch_execnz B2")
    a("WL1:")
    pair_loads(8, lambda m: (R_WG, R_WU)[m],
               lambda m, hi, e: ((16 * (e >> 2) + 8 * ((e >> 1) & 1) + 4 * hi) * 2752, (e & 1) * 2752))
    a("s_cbranch_execnz B2")
    a("WL2:")
    pair_loads(4, lambda m: R_WD, lambda m, hi, e: (e * 4096, hi * 2048))
    a("s_branch B2")

    a("W3_PRE:")
    a(f"""
    v_mov_b32 v8, -1
    v_mov_b32 v9, -1
    v_mov_b32 v10, -1
    v_mov_b32 v11, -1
    v_lshlrev_b32 v5, 17, v5
    v_lshl_add_u32 v7, v4, 4, v5
    v_lshl_add_u32 v5, v4, 3, v5
    v_lshlrev_b32 v6, 17, v6
    s_sub_u32 s60, {S_PUBD}, {4*REG}
    buffer_store_dwordx4 v[8:11], v7, {R_WS}, s60 offen sc1
    buffer_store_dwordx4 v[8:11], v7, {R_WS}, {S_PUBD} offen sc1
    s_sub_u32 s60, {S_PUBC}, {2*REG}
    buffer_store_dwordx2 v[8:9], v5, {R_WS}, s60 offen sc1
    s_sub_u32 s60, {S_PUBS}, {4*REG}
    s_mov_b64 exec, 0xff
    buffer_store_dwordx2 v[8:9], v6, {R_WS}, s60 offen sc1
    s_mov_b64 exec, -1
    buffer_load_dword v15, v31, {R_X}, {S_XO} offen
    v_lshlrev_b32 v3, 1, v13
    v_lshl_add_u32 v3, v12, 5, v3
    v_lshlrev_b32 v3, 13, v3
    v_lshl_add_u32 v3, v4, 4, v3
    s_lshl_b32 s60, s6, 19
    s_lshl_b32 s61, s5, 8
    s_add_u32 s60, s60, s61
    v_add_u32 v3, s60, v3
    """)
    ts(7)
    for hi in range(2):
        for e in range(8):
            so = (16 * (e >> 2) + 8 * ((e >> 1) & 1) + 4 * hi + (e & 1)) * 8192
            d = W + 8 * e + 4 if hi == 0 else ACC + 4 * e
            a(f"s_mov_b32 s60, {so}")
            a(f"buffer_load_dwordx4 {vr(d,4)}, v3, {R_WQ}, s60 offen nt")
    ts(8)
    a(f"""
    s_getreg_b32 s61, hwreg(HW_REG_XCC_ID)
    s_and_b32 s61, s61, 15
    s_or_b32 s61, s61, 0x80
    v_mov_b32 v4, s61
    s_mul_i32 {S_FAST}, s61, 0x01010101
    s_mov_b32 {S_VT}, 0
    s_mov_b64 exec, 1
    s_waitcnt vmcnt(16)
    """)
    ts(1)
    a(f"""
    buffer_store_byte v4, v25, {R_DBG}, s4 offen sc1
    s_mov_b64 exec, -1
    v_mov_b32 v8, v15
    v_lshrrev_b32 v3, 2, v25
    """)
    ts(2)
    spread_x()
    for gi in range(4):
        a(f"s_waitcnt vmcnt({13-4*gi})")
        quad_transpose(W, ACC, gi >> 1, gi & 1, False)
    zero2(range(ACC, ACC + 32, 4))
    matvec8(8, True)
    for s in pub_stores():
        a(s + (" sc1" if s.startswith("buffer") else ""))
    a("s_mov_b64 exec, -1")
    colsum_publish(2)
    ts(4)
    a(f"buffer_load_dword v4, v3, {R_DBG}, 0 offen sc1")
    k_loads()
    a("s_waitcnt vmcnt(16)")
    a("s_branch FL_chk")
    a("FL_retry:")
    a(f"s_sub_u32 {S_RETRY}, {S_RETRY}, 1")
    a("s_cbranch_scc1 FL_out")
    a(f"buffer_load_dword v4, v3, {R_DBG}, 0 offen sc1")
    a("s_waitcnt vmcnt(0)")
    a("FL_chk:")
    a("v_and_b32 v5, 0x80808080, v4")
    a("v_cmp_ne_u32 vcc, 0x80808080, v5")
    a("s_cbranch_vccnz FL_retry")
    a("s_branch FL_ok")
    a("FL_out:")
    a(f"s_mov_b32 {S_RETRY}, 0")
    a("FL_ok:")
    ts(5)
    a(f"""
    s_add_u32 s60, {S_ROWD}, {2*REG}
    buffer_load_dwordx4 v[40:43], v25, {R_WS}, s60 offen sc1
    buffer_load_dwordx4 v[44:47], v25, {R_WS}, s60 offen offset:1024 sc1
    """)
    row_loads()
    for i in range(8):
        v_load(i, ACC)
    a(f"""
    v_cmp_eq_u32 vcc, {S_FAST}, v4
    s_lshl_b32 s61, s5, 1
    s_lshr_b64 vcc, vcc, s61
    s_and_b32 s61, vcc_lo, 3
    s_cmp_eq_u32 s61, 3
    s_cselect_b32 {S_FAST}, 1, 0
    v_mov_b32 v4, {S_FAST}
    v_mov_b32 v5, {L_FAST}
    ds_write_b32 v5, v4
    s_mov_b32 s61, {f32(1e-5)}
    s_waitcnt vmcnt(8)
    s_branch G0_go
    G0_retry:
    s_sub_u32 {S_RETRY}, {S_RETRY}, 1
    s_cbranch_scc0 G0_loop
    s_mov_b32 {S_RETRY}, 0
    s_branch G0_ok
    G0_loop:
    buffer_load_dwordx4 v[40:43], v25, {R_WS}, s60 offen sc1
    buffer_load_dwordx4 v[44:47], v25, {R_WS}, s60 offen offset:1024 sc1
    """)
    row_loads()
    a("s_waitcnt vmcnt(0)")
    a("G0_go:")
    a("v_mov_b64 v[12:13], 0")
    a("v_mov_b64 v[4:5], 0")
    smf(12, 16, 40, 24)
    a("v_mov_b64 v[28:29], v[12:13]")
    row_reduce(QS)
    a("v_cvt_pk_bf16_f32 v4, v4, v5")
    check("G0")
    a(f"ds_write_b32 v27, v4 offset:{L_Q}")
    ts(6)
    for i in range(8, 16):
        v_load(i, ACC)
    bump([S_PUBD, S_PUBS, S_ROWD, S_ROWS])
    a("s_waitcnt lgkmcnt(0)")
    for j in range(8):
        k_swap(j)
    for gi in range(4):
        a(f"s_waitcnt vmcnt({12-4*gi})")
        quad_transpose(V, ACC, gi >> 1, gi & 1, True)
    a("s_branch PRE_DONE")
    a("END:")

    pads = a.resolve()
    ref = open(f"{KDIR}/{NAME}.s.ref").read().split("\n")
    head = [l for l in ref[:ref.index(".text")] if not l.startswith("; @launch") and not l.startswith(".amdgcn")]
    tail = ref[ref.index("s_endpgm"):]
    out = head + [f"; @launch grid=(256,1,1) block=(512,1,1) lds={L_SIZE}",
                  '.amdgcn_target "amdgcn-amd-amdhsa--gfx950"', ".text", f".globl {NAME}_kernel", ".p2align 8",
                  f".type {NAME}_kernel,@function", f"{NAME}_kernel:", a.text()] + tail
    return "\n".join(out), pads, len(a.ins)


if __name__ == "__main__":
    kw = {}
    dst = f"{KDIR}/{NAME}.s"
    for x in sys.argv[1:]:
        k, v = x.split("=")
        if k == "out":
            dst = v
        else:
            kw[k] = eval(v)
    txt, pads, n = build(**kw)
    open(dst, "w").write(txt)
    print(f"wrote {dst}: {n} lines, {pads} pad states")
```

```python
import sys, os, struct, math
sys.path.insert(0, os.path.dirname(os.path.abspath(__file__)))
from asmlib import Asm

NAME = "interleave_layers__mha_block_cached__swiglu_ffn__decode"
KDIR = "cdna_kernels"

ACC, W, K, V = 32, 64, 128, 192
REG = 131072
STAT, COL = 65536, 98304
L_O, L_ML, L_FAST, L_Q, L_RES, L_QP, L_SIZE = 0, 4096, 4160, 4352, 4608, 5632, 9728
R_K, R_V, R_X, R_WQ, R_WO, R_WG, R_WU, R_WD, R_OUT, R_DBG, R_WS = (f"s[{i}:{i+3}]" for i in range(8, 52, 4))
SEL = ("s62", "s63")
M_ALL, M_16, M_1, M_63 = "s[64:65]", "s[66:67]", "s[68:69]", "s[70:71]"
S_RETRY, S_FAST = "s72", "s73"
S_GAT, S_PUBD, S_PUBS, S_ROWD, S_ROWS, S_PUBC = "s74", "s75", "s76", "s77", "s78", "s79"
S_LAY, S_VT, S_WL, S_XO = "s80", "s81", "s82", "s83"
FULL = "row_mask:0xf bank_mask:0xf"
PROF_BASE = 0x200000


def f32(x):
    return "0x%08x" % struct.unpack("<I", struct.pack("<f", x))[0]


def vr(a, n):
    return f"v[{a}:{a+n-1}]"


DEFAULT = dict(prof=False, dry=False, fast=True, final_team=0, pf=False, prio=True, noclr=False, warm=False, xlate=False)


def build(**kw):
    P = dict(DEFAULT)
    P.update(kw)
    a = Asm()
    uid = [0]

    def lab(s):
        uid[0] += 1
        return f"{s}_{uid[0]}"

    def ts(k):
        if P["prof"]:
            a(f"s_memrealtime s[{84+2*k}:{85+2*k}]")

    def flush(slot):
        if not P["prof"]:
            return
        a("s_waitcnt lgkmcnt(0)")
        for k in range(9):
            a(f"v_writelane_b32 v30, s{84+2*k}, {k}")
        a(f"v_writelane_b32 v30, {S_RETRY}, 9")
        a(f"v_writelane_b32 v30, {S_FAST}, 10")
        a("s_lshl_b32 s60, s4, 3")
        a("s_add_u32 s60, s60, s3")
        a("s_lshl_b32 s60, s60, 12")
        if slot == "lay":
            a(f"s_lshl_b32 s61, {S_LAY}, 10")
            a("s_add_u32 s60, s60, s61")
            a(f"s_add_u32 s60, s60, {PROF_BASE + 1024}")
        else:
            a(f"s_add_u32 s60, s60, {PROF_BASE}")
        a(f"buffer_store_dword v30, v25, {R_WS}, s60 offen")

    def barrier(dry_ok=True):
        if dry_ok and P["dry"]:
            l = lab("nb")
            a(f"s_cbranch_execz {l}")
            a("s_barrier")
            a(f"{l}:")
        else:
            a("s_barrier")

    def smf(d, A, B, idx):
        a(f"v_smfmac_f32_16x16x64_bf16 {vr(d,4)}, {vr(A,4)}, {vr(B,8)}, v{idx}")

    def retry_stub(name):
        a(f"s_branch {name}_pre")
        a(f"{name}_retry:")
        a(f"s_sub_u32 {S_RETRY}, {S_RETRY}, 1")
        a(f"s_cbranch_scc0 {name}_loop")
        a(f"s_mov_b32 {S_RETRY}, 0")
        a(f"s_branch {name}_ok")
        a(f"{name}_pre:")

    def check(name):
        a(f"s_cbranch_vccnz {name}_retry")
        a(f"{name}_ok:")

    def row_store(stores):
        if not P["fast"]:
            for s in stores:
                a(s + (" sc1" if s.startswith("buffer") else ""))
            return
        l0, l1 = lab("slow"), lab("sent")
        a(f"s_cbranch_scc0 {l0}")
        for s in stores:
            a(s)
        a(f"s_cbranch_execnz {l1}")
        a(f"{l0}:")
        for s in stores:
            a(s + (" sc1" if s.startswith("buffer") else ""))
        a(f"{l1}:")

    def k_loads():
        for T in range(4):
            hi, g1 = T >> 1, T & 1
            for e2 in range(2):
                for hh in range(2):
                    a(f"buffer_load_dwordx4 {vr(K+16*T+8*hh+4*e2,4)}, v30, {R_K}, s{52+4*hi+2*e2+g1} offen offset:{128*hh} nt")

    def v_load(i, S):
        hi, e2, g1, e0 = i >> 3, (i >> 2) & 1, (i >> 1) & 1, i & 1
        qi = i & 7
        d = V + 8 * qi + 4 if hi == 0 else S + 4 * qi
        a(f"buffer_load_dwordx4 {vr(d,4)}, v25, {R_V}, s{52+4*hi+2*e2+g1} offen offset:{1024*e0} nt")

    def k_swap(j):
        b = K + 8 * j
        for c in range(4):
            a(f"v_mov_b32 v{4+c}, v{b+c}")
        for c in range(4):
            a(f"v_mov_b32_dpp v{b+c}, v{b+4+c} row_ror:8 row_mask:0xf bank_mask:0xc")
        for c in range(4):
            a(f"v_mov_b32_dpp v{b+4+c}, v{4+c} row_ror:8 row_mask:0xf bank_mask:0x3")

    def quad_transpose(F, S, hi, e2, swap):
        raw = lambda e: (F + 8 * e + 4) if hi == 0 else S + 4 * e
        if swap:
            for e0 in range(2):
                for c in range(4):
                    a(f"v_permlane32_swap_b32 v{raw(4*e2+e0)+c}, v{raw(4*e2+2+e0)+c}")
        for c in range(4):
            for e1 in range(2):
                e = 4 * e2 + 2 * e1
                for jl in range(2):
                    a(f"v_perm_b32 v{F+8*(2*c+jl)+4*hi+2*e2+e1}, v{raw(e+1)+c}, v{raw(e)+c}, {SEL[jl]}")

    def pair_pos(G, u):
        if G == 8:
            return 56 + 2 * u
        mat, hi, e2 = G >> 2, (G >> 1) & 1, G & 1
        return W + 8 * (2 * u + mat) + 4 * hi + 2 * e2

    def pair_loads(ngroups, srd, off):
        last = None
        for G in range(ngroups):
            mat, hi, e2 = G >> 2, (G >> 1) & 1, G & 1
            for u in range(4):
                so, imm = off(mat, hi, 4 * e2 + u)
                if so != last:
                    a(f"s_mov_b32 s60, {so}")
                    last = so
                a(f"buffer_load_dwordx2 {vr(pair_pos(G+1,u),2)}, v3, {srd(mat)}, s60 offen offset:{imm} nt")

    def pair_transpose(ngroups, newer):
        for G in range(ngroups):
            a(f"s_waitcnt vmcnt({4*(ngroups-1-G)+newer})")
            for c in range(2):
                for v in range(2):
                    for jl in range(2):
                        a(f"v_perm_b32 v{pair_pos(G,2*c+jl)+v}, v{pair_pos(G+1,2*v+1)+c}, v{pair_pos(G+1,2*v)+c}, {SEL[jl]}")

    def zero2(regs):
        for r in regs:
            a(f"v_mov_b64 {vr(r,2)}, 0")

    def matvec8(A, stats):
        if stats:
            a(f"v_mfma_f32_16x16x32_bf16 v[4:7], {vr(A,4)}, {vr(A,4)}, 0")
            a(f"v_mfma_f32_16x16x32_bf16 v[12:15], {vr(A,4)}, v[20:23], 0")
        fill = []
        if stats:
            fill = [None, None, f"v_add_f32_dpp v5, v5, v4 row_shl:1 {FULL}", "v_add_f32 v4, v12, v13"]
        else:
            fill = [None] * 4
        fill += [f"v_add_f32 v{ACC+4*T}, v{ACC+4*T}, v{ACC+4*T+1}" for T in range(4)]
        for T in range(8):
            smf(ACC + 4 * T, A, W + 8 * T, 1)
            if fill[T]:
                a(fill[T])
        a("v_add_f32 v48, v48, v49")
        a("v_cvt_pk_bf16_f32 v32, v32, v36")
        a("v_add_f32 v52, v52, v53")
        a("v_cvt_pk_bf16_f32 v33, v40, v44")
        a("v_add_f32 v56, v56, v57")
        a("v_cvt_pk_bf16_f32 v34, v48, v52")
        a(f"s_mov_b64 exec, {M_16}")
        a("v_add_f32 v60, v60, v61")
        a("v_cvt_pk_bf16_f32 v35, v56, v60")

    def pub_stores():
        return [f"buffer_store_dwordx4 v[32:35], v25, {R_WS}, {S_PUBD} offen",
                f"s_mov_b64 exec, {M_1}",
                f"buffer_store_dwordx2 v[4:5], v25, {R_WS}, {S_PUBS} offen"]

    def spread_x(keep=True):
        for i in range(1, 4):
            a(f"v_mov_b32_dpp v{8+i}, v8 row_shl:{2*i} {FULL}")
        if keep:
            a(f"ds_write_b32 v25, v8 offset:{L_RES}")

    def colsum_publish(delta):
        zero2(range(ACC, ACC + 32, 4))
        matvec8(20, False)
        a(f"s_add_u32 s60, {S_PUBD}, {delta*REG}")
        a(f"buffer_store_dwordx4 v[32:35], v25, {R_WS}, s60 offen sc1")
        a(f"s_mov_b64 exec, {M_ALL}")

    def residual():
        a(f"ds_read_b32 v12, v25 offset:{L_RES}")
        zero2(range(48, 64, 4))
        a("s_waitcnt lgkmcnt(0)")
        a("v_lshlrev_b32 v14, 16, v12")
        a("v_and_b32 v15, 0xffff0000, v12")
        a("v_mul_f32 v14, 0.5, v14")
        a("v_mul_f32 v15, 0.5, v15")

    def col_gather(name):
        a(f"{name}_loop:")
        for i in range(4):
            a(f"buffer_load_dwordx4 {vr(ACC+4*i,4)}, v25, {R_WS}, {S_GAT} offen offset:{1024*i} sc1")
        a("v_mov_b64 v[4:5], v[14:15]")
        a("s_waitcnt vmcnt(2)")
        smf(4, 16, 32, 24)
        a("s_waitcnt vmcnt(0)")
        smf(4, 16, 40, 24)
        zero2(range(32, 48, 4))
        a(f"v_add_f32_dpp v4, v4, v4 row_ror:8 {FULL}")
        a(f"v_add_f32_dpp v5, v5, v5 row_ror:8 {FULL}")
        a("v_cmp_u_f32 vcc, v4, v5")
        a("v_cvt_pk_bf16_f32 v8, v4, v5")
        check(name)

    def row_loads():
        a(f"buffer_load_dwordx2 v[8:9], v26, {R_WS}, {S_ROWS} offen sc1")
        a(f"buffer_load_dwordx4 v[32:35], v25, {R_WS}, {S_ROWD} offen sc1")
        a(f"buffer_load_dwordx4 v[36:39], v25, {R_WS}, {S_ROWD} offen offset:1024 sc1")

    def row_reduce(scale):
        smf(4, 16, 32, 24)
        for sh in (4, 2, 1):
            a(f"v_add_f32_dpp v8, v8, v8 row_ror:{sh} {FULL}")
            a(f"v_add_f32_dpp v9, v9, v9 row_ror:{sh} {FULL}")
        a(f"v_mul_f32 v8, {f32(1/512)}, v8")
        a(f"v_mul_f32 v9, {f32(1/512)}, v9")
        a("v_fma_f32 v9, -v8, v8, v9")
        a("v_add_f32_e64 v9, |v9|, s61")
        a("v_rsq_f32 v9, v9")
        a("v_fma_f32 v4, -v8, v28, v4")
        a("v_fma_f32 v5, -v8, v29, v5")
        if scale is not None:
            a(f"v_mul_f32 v9, {f32(scale)}, v9")
        a("v_mul_f32 v4, v4, v9")
        a("v_mul_f32 v5, v5, v9")
        a("v_cmp_u_f32 vcc, v4, v5")

    QS = 128 ** -0.5 * math.log2(math.e)

    def bump(regs):
        for r in regs:
            a(f"s_add_u32 {r}, {r}, {REG}")

    def next_layer(regs):
        bump(regs)
        a(f"s_mov_b32 {S_LAY}, 1")
        a(f"s_mov_b32 {S_VT}, 0")
        a(f"s_mov_b32 {S_WL}, 0")
        a("s_branch ATT")

    def set_masks(live):
        if live:
            a(f"s_mov_b64 {M_ALL}, -1")
            a(f"s_mov_b64 {M_16}, 0xffff")
            a(f"s_mov_b64 {M_1}, 1")
            a("s_mov_b32 s70, 0")
            a("s_brev_b32 s71, 1")
        else:
            for m in (M_ALL, M_16, M_1, M_63):
                a(f"s_mov_b64 {m}, 0")
        a(f"s_mov_b64 exec, {M_ALL}")

    a("s_cmp_ge_u32 s2, 0x100")
    a("s_cbranch_scc1 END")
    ts(0)
    a(f"""
    s_load_dwordx2 s[8:9], s[0:1], 8
    s_load_dwordx2 s[12:13], s[0:1], 16
    s_load_dwordx2 s[16:17], s[0:1], 0
    s_load_dwordx2 s[20:21], s[0:1], 24
    s_load_dwordx2 s[44:45], s[0:1], 80
    s_load_dwordx2 s[48:49], s[0:1], 88
    v_lshrrev_b32 v1, 6, v0
    v_and_b32 v3, 63, v0
    s_and_b32 s4, s2, 7
    s_lshl_b32 s4, s4, 5
    v_readfirstlane_b32 s3, v1
    s_lshr_b32 s5, s2, 3
    s_add_u32 s4, s4, s5
    s_lshr_b32 s5, s4, 3
    s_and_b32 s6, s4, 7
    v_and_b32 v4, 15, v0
    v_bfe_u32 v5, v0, 4, 2
    v_lshlrev_b32 v25, 4, v3
    v_and_b32 v6, 7, v0
    v_bfe_u32 v7, v0, 3, 1
    v_lshlrev_b32 v30, 8, v6
    v_lshl_add_u32 v30, v7, 6, v30
    v_lshl_add_u32 v30, v5, 4, v30
    s_lshl_b32 s52, s4, 17
    s_lshr_b32 s60, s3, 2
    s_lshl_b32 s60, s60, 16
    s_add_u32 s52, s52, s60
    s_and_b32 s60, s3, 3
    s_lshl_b32 s60, s60, 11
    s_add_u32 s52, s52, s60
    """)
    for i in range(1, 8):
        a(f"s_add_u32 s{52+i}, s52, {8192*i}")
    sizes = [1 << 25, 1 << 25, 1024, 1 << 22, 1 << 22, 512 * 2752, 512 * 2752, 1376 * 1024, 1024, 256,
             (PROF_BASE + (8 << 20)) if P["prof"] else (1 << 20)]

    def srd_tail(idx):
        for i in idx:
            a(f"s_mov_b32 s{10+4*i}, {sizes[i]}")
            a(f"s_mov_b32 s{11+4*i}, 0x20000")

    srd_tail((0, 1, 2, 3, 9, 10))
    a(f"""
    v_lshlrev_b32 v31, 4, v6
    v_lshl_add_u32 v31, v5, 2, v31
    v_bfe_u32 v12, v0, 4, 1
    v_bfe_u32 v13, v0, 5, 1
    s_add_u32 s61, s6, s3
    s_add_u32 s61, s61, 5
    s_and_b32 s61, s61, 7
    v_lshlrev_b32 v3, 1, v13
    v_lshl_add_u32 v3, v12, 5, v3
    v_lshlrev_b32 v3, 13, v3
    v_lshl_add_u32 v3, v4, 4, v3
    s_lshl_b32 {S_XO}, s61, 7
    s_lshl_b32 s61, s61, 19
    s_lshl_b32 s60, s5, 8
    s_add_u32 s60, s60, s61
    v_add_u32 v3, s60, v3
    s_cmp_eq_u32 s3, {99 if P["noclr"] else 7}
    s_waitcnt lgkmcnt(0)
    """)
    if P["warm"]:
        for b in (48, 44, 16, 12):
            a(f"s_load_dword s62, s[{b}:{b+1}], 0")
    a("s_cbranch_scc1 CLEAR")
    a("LOADS:")
    ts(1)
    if P["prio"]:
        a("s_setprio 1")
    if not P["xlate"]:
        a(f"buffer_load_dword v8, v31, {R_X}, {S_XO} offen")
    a("s_cmp_eq_u32 s3, 3")
    a("s_cbranch_scc1 LD_WQ")
    a("LD_K:")
    k_loads()
    if P["xlate"]:
        a(f"buffer_load_dword v8, v31, {R_X}, {S_XO} offen")
    a("s_cbranch_scc1 LD_V")
    a("LD_WQ:")
    for hi in range(2):
        for e in range(8):
            so = (16 * (e >> 2) + 8 * ((e >> 1) & 1) + 4 * hi + (e & 1)) * 8192
            d = W + 8 * e + 4 if hi == 0 else ACC + 4 * e
            a(f"s_mov_b32 s60, {so}")
            a(f"buffer_load_dwordx4 {vr(d,4)}, v3, {R_WQ}, s60 offen")
    a("s_cbranch_scc1 LD_K")
    a("LD_V:")
    ts(2)
    if P["prio"]:
        a("s_setprio 0")
    for i in range(8):
        v_load(i, ACC)
    ts(4)
    a(f"""
    s_waitcnt lgkmcnt(0)
    s_load_dwordx2 s[24:25], s[0:1], 32
    s_load_dwordx2 s[28:29], s[0:1], 48
    s_load_dwordx2 s[32:33], s[0:1], 56
    s_load_dwordx2 s[36:37], s[0:1], 64
    s_load_dwordx2 s[40:41], s[0:1], 72
    s_mov_b32 s62, 0x05040100
    s_mov_b32 s63, 0x07060302
    v_and_b32 v9, 3, v0
    v_min_u32 v9, 1, v9
    v_mul_u32_u24 v1, 0xaaaa, v9
    v_or_b32 v1, 0x4444, v1
    v_lshlrev_b32 v9, 4, v9
    v_lshl_add_u32 v14, v5, 5, v9
    v_bfe_u32 v9, v0, 2, 1
    v_mul_u32_u24 v24, 0xaaaa, v9
    v_or_b32 v24, 0x4444, v24
    v_and_b32 v10, 1, v0
    v_lshlrev_b32 v9, 4, v10
    v_mov_b32 v11, 0x3f80
    v_lshlrev_b32 v9, v9, v11
    v_mul_lo_u32 v17, v9, v7
    v_sub_u32 v16, v9, v17
    v_mov_b32 v18, v16
    v_mov_b32 v19, v17
    v_mov_b32 v20, 0x3f803f80
    v_mov_b32 v21, v20
    v_mov_b32 v22, v20
    v_mov_b32 v23, v20
    v_lshl_add_u32 v26, v5, 1, v4
    v_and_b32 v26, 7, v26
    v_lshlrev_b32 v26, 7, v26
    v_lshrrev_b32 v27, 1, v4
    v_lshlrev_b32 v27, 5, v27
    v_lshl_add_u32 v27, v10, 3, v27
    v_lshl_add_u32 v27, v12, 4, v27
    v_lshl_add_u32 v27, v13, 2, v27
    s_lshl_b32 s60, s3, 9
    v_lshl_add_u32 v2, v4, 4, s60
    s_lshl_b32 s60, s3, 2
    s_add_u32 s60, s60, {L_ML}
    v_writelane_b32 v2, s60, 63
    v_add_u32 v0, {L_Q}, v14
    """)
    set_masks(True)
    for gi in range(4):
        a(f"s_waitcnt vmcnt({20-4*gi})")
        if gi == 3:
            spread_x(False)
        quad_transpose(W, ACC, gi >> 1, gi & 1, False)
    ts(5)
    zero2(range(ACC, ACC + 32, 4))
    matvec8(8, True)
    a(f"""
    ds_write_b128 v2, v[32:35] offset:{L_QP}
    s_mov_b64 exec, {M_1}
    ds_write_b64 v2, v[4:5] offset:{L_O}
    s_mov_b64 exec, {M_ALL}
    """)
    zero2(range(ACC + 4, ACC + 32, 4))
    zero2([ACC])
    matvec8(20, False)
    a(f"""
    ds_write_b128 v2, v[32:35] offset:{L_QP+256}
    s_mov_b64 exec, {M_ALL}
    s_cmp_lt_u32 s3, 4
    s_cbranch_scc1 SWAPS
    B0:
    s_waitcnt lgkmcnt(0)
    """)
    ts(6)
    a("""
    s_barrier
    s_cbranch_scc1 ROLES
    SWAPS:
    """)
    for j in range(8):
        k_swap(j)
    srd_tail((4, 5, 6, 7, 8))
    a(f"""
    s_and_b32 s7, s5, 3
    s_lshl_b32 s7, s7, 3
    s_lshr_b32 s60, s5, 2
    s_add_u32 s7, s7, s60
    s_lshl_b32 {S_XO}, s6, 7
    s_add_u32 s60, s3, 1
    s_lshr_b32 s60, s60, 1
    s_lshl_b32 s60, s60, 18
    s_lshl_b32 {S_PUBD}, s4, 8
    s_add_u32 {S_PUBD}, {S_PUBD}, s60
    s_lshl_b32 {S_ROWD}, s5, 11
    s_add_u32 {S_ROWD}, {S_ROWD}, s60
    s_add_u32 s60, s60, {STAT}
    s_lshl_b32 {S_PUBS}, s4, 7
    s_add_u32 {S_PUBS}, {S_PUBS}, s60
    s_lshl_b32 {S_ROWS}, s5, 10
    s_add_u32 {S_ROWS}, {S_ROWS}, s60
    s_and_b32 s60, s3, 2
    s_lshl_b32 s60, s60, 17
    s_lshl_b32 {S_GAT}, s6, 12
    s_add_u32 {S_GAT}, {S_GAT}, s60
    s_add_u32 {S_GAT}, {S_GAT}, {COL}
    s_lshl_b32 s60, s5, 7
    s_add_u32 {S_PUBC}, {S_GAT}, s60
    s_mov_b32 {S_RETRY}, 0x40000
    s_mov_b32 {S_FAST}, 0
    s_mov_b32 {S_LAY}, 0
    s_mov_b32 {S_VT}, 1
    s_cmp_lt_u32 s3, 4
    s_cselect_b32 {S_WL}, 1, 0
    s_cbranch_scc1 B0
    s_branch PRE_DONE
    ROLES:
    v_bfe_u32 v14, v25, 4, 4
    v_lshrrev_b32 v15, 8, v25
    s_cmp_eq_u32 s3, 3
    s_cbranch_scc0 ROLES_W
    v_lshlrev_b32 v6, 2, v26
    v_lshl_add_u32 v7, v15, 8, v25
    ds_write_b32 v25, v8 offset:{L_RES}
    ds_read_b64 v[8:9], v6 offset:{L_O}
    ds_read_b128 v[40:43], v7 offset:{L_QP+256}
    ds_read_b128 v[44:47], v7 offset:{L_QP+256+2048}
    ds_read_b128 v[32:35], v7 offset:{L_QP}
    ds_read_b128 v[36:39], v7 offset:{L_QP+2048}
    v_mov_b64 v[12:13], 0
    v_mov_b64 v[4:5], 0
    v_lshrrev_b32 v3, 2, v25
    s_mov_b32 s61, {f32(1e-5)}
    s_waitcnt lgkmcnt(0)
    """)
    smf(12, 16, 40, 24)
    a("v_mov_b64 v[28:29], v[12:13]")
    row_reduce(QS)
    a(f"""
    v_cvt_pk_bf16_f32 v4, v4, v5
    ds_write_b32 v27, v4 offset:{L_Q}
    s_branch PRE_DONE
    ROLES_W:
    v_and_b32 v12, 1, v15
    v_lshrrev_b32 v13, 1, v15
    v_and_b32 v10, 1, v14
    s_cmp_eq_u32 s3, 0
    s_cbranch_scc1 W0_SET
    s_cmp_eq_u32 s3, 1
    s_cbranch_scc1 W1_SET
    v_lshl_add_u32 v3, v12, 5, v13
    v_lshlrev_b32 v3, 10, v3
    v_lshlrev_b32 v20, 3, v14
    s_lshl_b32 s60, s7, 16
    s_add_u32 s60, s60, {S_XO}
    v_add3_u32 v3, v3, v20, s60
    s_branch PRE_DONE
    W1_SET:
    v_lshlrev_b32 v3, 1, v13
    v_lshl_add_u32 v3, v12, 5, v3
    s_lshl_b32 s60, s6, 6
    v_add_u32 v3, s60, v3
    v_mul_u32_u24 v3, 2752, v3
    s_lshl_b32 s60, s7, 7
    v_lshl_add_u32 v4, v14, 3, s60
    v_add_u32 v3, v3, v4
    v_cmp_lt_u32 vcc, 2751, v4
    v_bfrev_b32 v4, 1
    v_cndmask_b32 v3, v3, v4, vcc
    s_branch PRE_DONE
    W0_SET:
    v_lshlrev_b32 v20, 3, v14
    v_lshl_add_u32 v3, v15, 13, v20
    s_lshl_b32 s60, s5, 17
    s_add_u32 s60, s60, {S_XO}
    v_add_u32 v3, s60, v3
    v_lshl_add_u32 v20, v15, 1, v20
    v_lshlrev_b32 v16, 4, v14
    v_lshl_add_u32 v16, v15, 10, v16
    v_lshlrev_b32 v17, 3, v15
    v_add_u32 v17, {L_ML}, v17
    v_mov_b32 v18, 0
    v_bfe_u32 v4, v14, 1, 1
    v_mul_u32_u24 v24, 0xaaaa, v4
    v_or_b32 v24, 0x4444, v24
    v_lshrrev_b32 v5, 2, v14
    v_lshl_add_u32 v5, v5, 1, v10
    v_lshlrev_b32 v19, 8, v5
    v_lshl_add_u32 v19, v15, 5, v19
    v_lshl_add_u32 v19, v4, 4, v19
    """)
    a("PRE_DONE:")
    ts(3)
    flush("pre")

    a("ATT:")
    a("s_waitcnt lgkmcnt(0)")
    barrier()
    ts(0)
    a("ds_read_b128 v[4:7], v0")
    a("ds_read_b128 v[8:11], v0 offset:128")
    zero2(range(48, 64, 4))
    for r in range(32, 48, 2):
        a(f"v_mov_b32 v{r}, 0")
    a("s_waitcnt lgkmcnt(0)")
    for T, hh in ((0, 0), (1, 0), (0, 1), (1, 1), (2, 0), (3, 0), (2, 1), (3, 1)):
        smf(48 + 4 * T, 4 + 4 * hh, K + 16 * T + 8 * hh, 1)
    a(f"""
    v_add_f32 v12, v48, v49
    v_add_f32 v13, v52, v53
    v_mov_b32 v48, 0
    v_mov_b32 v50, 0
    v_add_f32 v14, v56, v57
    v_mov_b32 v52, 0
    v_max3_f32 v4, v12, v13, v14
    v_mov_b32_dpp v12, v13 quad_perm:[0,1,2,3] row_mask:0x2 bank_mask:0xf
    v_add_f32 v15, v60, v61
    v_max_f32 v4, v4, v15
    v_mov_b32_dpp v12, v14 quad_perm:[0,1,2,3] row_mask:0x4 bank_mask:0xf
    v_mov_b32 v54, 0
    v_max_f32_dpp v4, v4, v4 row_ror:8 {FULL}
    v_mov_b32_dpp v12, v15 quad_perm:[0,1,2,3] row_mask:0x8 bank_mask:0xf
    v_mov_b32 v56, 0
    v_max_f32_dpp v4, v4, v4 row_ror:4 {FULL}
    v_mov_b32 v58, 0
    v_mov_b32 v60, 0
    v_max_f32_dpp v4, v4, v4 row_ror:2 {FULL}
    v_mov_b32 v62, 0
    s_cmp_eq_u32 {S_VT}, 0
    v_max_f32_dpp v4, v4, v4 row_ror:1 {FULL}
    v_sub_f32 v5, v12, v4
    v_exp_f32 v5, v5
    v_mov_b32_dpp v6, v5 row_shl:4 {FULL}
    v_cvt_pk_bf16_f32 v8, v5, v6
    v_add_f32_dpp v5, v5, v5 row_ror:8 {FULL}
    v_mov_b32_dpp v9, v8 row_shl:8 {FULL}
    v_mov_b32_dpp v10, v8 row_shl:1 {FULL}
    v_mov_b32_dpp v11, v8 row_shl:9 {FULL}
    v_add_f32_dpp v5, v5, v5 row_ror:4 {FULL}
    s_cbranch_scc0 VT
    PV:
    """)
    fill = [None, f"v_add_f32_dpp v5, v5, v5 row_ror:2 {FULL}", None, f"v_add_f32_dpp v5, v5, v5 row_ror:1 {FULL}",
            None, "v_add_f32_dpp v5, v5, v5 row_bcast:15 row_mask:0xa bank_mask:0xf",
            "v_add_f32 v32, v32, v34", "v_add_f32_dpp v5, v5, v5 row_bcast:31 row_mask:0xc bank_mask:0xf"]
    for j in range(8):
        smf(ACC + 4 * j, 8, V + 8 * j, 1)
        if fill[j]:
            a(fill[j])
    a(f"""
    v_add_f32 v33, v36, v38
    v_add_f32 v34, v40, v42
    v_add_f32 v35, v44, v46
    s_mov_b64 exec, {M_63}
    ds_write2_b32 v2, v4, v5 offset1:8
    s_mov_b64 exec, {M_16}
    ds_write_b128 v2, v[32:35]
    v_add_f32 v48, v48, v50
    v_add_f32 v49, v52, v54
    v_add_f32 v50, v56, v58
    v_add_f32 v51, v60, v62
    ds_write_b128 v2, v[48:51] offset:256
    s_mov_b64 exec, {M_ALL}
    s_cmp_eq_u32 {S_WL}, 1
    s_cbranch_scc1 WL
    B2:
    s_cmp_lg_u32 s3, 0
    s_waitcnt lgkmcnt(0)
    """)
    ts(1)
    barrier()
    a("s_cbranch_scc1 NOT0")

    ts(2)
    a(f"""
    ds_read_b32 v48, v18 offset:{L_FAST}
    ds_read_b128 v[4:7], v18 offset:{L_ML}
    ds_read_b128 v[8:11], v18 offset:{L_ML+16}
    ds_read2_b64 v[12:15], v17 offset1:4
    ds_read_b128 v[32:35], v16
    ds_read_b128 v[40:43], v16 offset:512
    ds_read_b128 v[36:39], v16 offset:256
    ds_read_b128 v[44:47], v16 offset:768
    s_waitcnt lgkmcnt({0 if P['prof'] else 4})
    v_max3_f32 v4, v4, v5, v6
    v_max3_f32 v8, v8, v9, v10
    v_max3_f32 v4, v4, v7, v11
    v_max_f32 v4, v4, v8
    v_sub_f32 v12, v12, v4
    v_sub_f32 v13, v13, v4
    v_exp_f32 v12, v12
    v_exp_f32 v13, v13
    v_readfirstlane_b32 {S_FAST}, v48
    v_mul_f32 v5, v14, v12
    s_waitcnt lgkmcnt(0)
    """)
    for r in (32, 34, 36, 38):
        a(f"v_pk_mul_f32 {vr(r,2)}, {vr(r,2)}, v[12:13] op_sel_hi:[1,0]")
    a("v_fmac_f32 v5, v15, v13")
    for r in (32, 36, 34, 38):
        a(f"v_pk_fma_f32 {vr(r,2)}, {vr(r+8,2)}, v[12:13], {vr(r,2)} op_sel:[0,1,0]")
    a(f"""
    v_add_f32_dpp v5, v5, v5 row_bcast:15 row_mask:0xa bank_mask:0xf
    s_cmp_eq_u32 {S_FAST}, 1
    v_permlane32_swap_b32 v32, v36
    v_permlane32_swap_b32 v33, v37
    v_permlane32_swap_b32 v34, v38
    v_permlane32_swap_b32 v35, v39
    v_pk_add_f32 v[32:33], v[32:33], v[36:37]
    v_pk_add_f32 v[34:35], v[34:35], v[38:39]
    v_add_f32_dpp v5, v5, v5 row_bcast:31 row_mask:0xc bank_mask:0xf
    v_permlane16_swap_b32 v32, v34
    v_permlane16_swap_b32 v33, v35
    v_pk_add_f32 v[32:33], v[32:33], v[34:35]
    v_cvt_pk_bf16_f32 v6, v32, v33
    """)
    row_store([f"buffer_store_dword v6, v27, {R_WS}, {S_PUBD} offen",
               f"s_mov_b64 exec, {M_63}",
               f"buffer_store_dwordx2 v[4:5], v18, {R_WS}, {S_PUBS} offen"])
    a(f"s_mov_b64 exec, {M_ALL}")
    ts(3)
    a(f"s_cmp_eq_u32 {S_WL}, 0")
    a("s_cbranch_scc1 G1_pre")
    pair_transpose(8, 2)
    retry_stub("G1")
    a("s_waitcnt vmcnt(0)")
    ts(4)
    a(f"""
    G1_loop:
    buffer_load_dwordx2 v[12:13], v26, {R_WS}, {S_ROWS} offen sc1
    buffer_load_dwordx4 v[4:7], v19, {R_WS}, {S_ROWD} offen sc1
    buffer_load_dwordx4 v[8:11], v19, {R_WS}, {S_ROWD} offen offset:128 sc1
    """)
    zero2(range(32, 48, 2))
    a("s_waitcnt vmcnt(0)")
    ts(5)
    fill = [f"v_max_f32_dpp v14, v12, v12 row_ror:4 {FULL}",
            f"v_max_f32_dpp v14, v14, v14 row_ror:2 {FULL}",
            f"v_max_f32_dpp v14, v14, v14 row_ror:1 {FULL}",
            "v_sub_f32 v12, v12, v14\nv_exp_f32 v12, v12",
            "v_mul_f32 v13, v13, v12",
            f"v_add_f32_dpp v13, v13, v13 row_ror:4 {FULL}",
            f"v_add_f32_dpp v13, v13, v13 row_ror:2 {FULL}",
            f"v_add_f32_dpp v13, v13, v13 row_ror:1 {FULL}"]
    for i, (j, hh) in enumerate(((0, 0), (2, 0), (0, 1), (2, 1), (1, 0), (3, 0), (1, 1), (3, 1))):
        smf(ACC + 4 * j, 4 + 4 * hh, W + 8 * (2 * j + hh), 24)
        a(fill[i])
    a(f"""
    v_rcp_f32 v13, v13
    v_pk_add_f32 v[32:33], v[32:33], v[34:35]
    v_mul_f32 v12, v12, v13
    v_pk_add_f32 v[40:41], v[40:41], v[42:43]
    v_pk_add_f32 v[36:37], v[36:37], v[38:39]
    v_mul_f32_dpp v32, v12, v32 row_newbcast:0 {FULL}
    v_mul_f32_dpp v40, v12, v40 row_newbcast:0 {FULL}
    v_pk_add_f32 v[44:45], v[44:45], v[46:47]
    v_fmac_f32_dpp v32, v12, v33 row_newbcast:1 {FULL}
    v_fmac_f32_dpp v40, v12, v41 row_newbcast:1 {FULL}
    v_mul_f32_dpp v36, v12, v36 row_newbcast:0 {FULL}
    v_mul_f32_dpp v44, v12, v44 row_newbcast:0 {FULL}
    v_fmac_f32_dpp v36, v12, v37 row_newbcast:1 {FULL}
    v_fmac_f32_dpp v44, v12, v45 row_newbcast:1 {FULL}
    v_permlane32_swap_b32 v32, v40
    v_add_f32 v32, v32, v40
    v_permlane32_swap_b32 v36, v44
    v_add_f32 v36, v36, v44
    v_permlane16_swap_b32 v32, v36
    v_add_f32 v32, v32, v36
    v_cmp_u_f32 vcc, v32, v32
    v_cvt_pk_bf16_f32 v4, v32, v32
    """)
    check("G1")
    a(f"buffer_store_short v4, v20, {R_WS}, {S_PUBC} offen sc1")
    ts(6)
    a("s_waitcnt vmcnt(0)")
    barrier()
    ts(7)
    a("s_cbranch_execnz END0")

    a("ST1:")
    a(f"s_cmp_eq_u32 {S_WL}, 0")
    a("s_cbranch_scc1 ST1_B")
    a(f"v_mov_b32 v4, {L_FAST}")
    a("ds_read_b32 v4, v4")
    a("s_waitcnt lgkmcnt(0)")
    a(f"v_readfirstlane_b32 {S_FAST}, v4")
    pair_transpose(8, 0)
    colsum_publish(5)
    a("ST1_B:")
    residual()
    ts(2)
    retry_stub("G2")
    barrier()
    ts(3)
    col_gather("G2")
    ts(4)
    a(f"s_cmp_eq_u32 {S_FAST}, 1")
    spread_x()
    matvec8(8, True)
    row_store(pub_stores())
    a(f"s_mov_b64 exec, {M_ALL}")
    ts(5)
    a("s_waitcnt vmcnt(0) lgkmcnt(0)")
    barrier()
    ts(6)
    a("s_cbranch_execnz END1")

    a("ST2:")
    a(f"s_cmp_eq_u32 {S_WL}, 0")
    a("s_cbranch_scc1 ST2_B")
    pair_transpose(4, 0)
    a(f"s_add_u32 s60, {S_ROWD}, {5*REG}")
    retry_stub("CG")
    barrier()
    a(f"""
    CG_loop:
    buffer_load_dwordx4 v[32:35], v25, {R_WS}, s60 offen sc1
    buffer_load_dwordx4 v[36:39], v25, {R_WS}, s60 offen offset:1024 sc1
    v_mov_b64 v[4:5], 0
    s_waitcnt vmcnt(0)
    """)
    smf(4, 16, 32, 24)
    a("v_cmp_u_f32 vcc, v4, v5")
    a("v_mov_b64 v[28:29], v[4:5]")
    check("CG")
    a("s_branch ST2_C")
    a("ST2_B:")
    barrier(False)
    a("ST2_C:")
    for r in range(48, 64, 2):
        a(f"v_mov_b32 v{r}, 0")
    a(f"s_mov_b32 s61, {f32(1e-5)}")
    ts(2)
    retry_stub("G3")
    barrier()
    ts(3)
    a("G3_loop:")
    row_loads()
    a("v_mov_b64 v[4:5], 0")
    a("s_waitcnt vmcnt(0)")
    ts(4)
    row_reduce(None)
    a(f"v_mul_f32 v6, {f32(-math.log2(math.e))}, v4")
    check("G3")
    a(f"""
    v_exp_f32 v6, v6
    v_mul_f32 v4, v4, v5
    v_add_f32 v6, 1.0, v6
    v_rcp_f32 v6, v6
    v_mul_f32 v4, v4, v6
    v_mov_b32_dpp v5, v4 row_shl:1 {FULL}
    v_cvt_pk_bf16_f32 v8, v4, v5
    v_mov_b32_dpp v9, v8 row_shl:4 {FULL}
    v_mov_b32_dpp v10, v8 row_shl:8 {FULL}
    v_mov_b32_dpp v11, v8 row_shl:12 {FULL}
    """)
    for j in range(4):
        smf(48 + 4 * j, 8, W + 16 * j, 1)
    a(f"""
    v_add_f32 v48, v48, v50
    v_add_f32 v52, v52, v54
    v_cvt_pk_bf16_f32 v4, v48, v52
    s_mov_b64 exec, {M_16}
    v_add_f32 v56, v56, v58
    v_add_f32 v60, v60, v62
    v_cvt_pk_bf16_f32 v5, v56, v60
    buffer_store_dwordx2 v[4:5], v20, {R_WS}, {S_PUBC} offen sc1
    s_mov_b64 exec, {M_ALL}
    """)
    ts(5)
    a("s_waitcnt vmcnt(0)")
    barrier()
    ts(6)
    a("s_cbranch_execnz END2")

    a("ST3:")
    barrier()
    barrier()
    residual()
    a(f"s_mov_b32 s61, {f32(1e-5)}")
    ts(2)
    retry_stub("G4")
    barrier()
    ts(3)
    col_gather("G4")
    ts(4)
    a(f"s_cmp_eq_u32 {S_LAY}, 1")
    a("s_cbranch_scc1 FINAL")
    a(f"s_cmp_eq_u32 {S_FAST}, 1")
    spread_x()
    matvec8(8, True)
    row_store(pub_stores())
    a(f"s_mov_b64 exec, {M_ALL}")
    ts(5)
    retry_stub("G5")
    a("s_waitcnt vmcnt(0)")
    ts(6)
    a("G5_loop:")
    row_loads()
    a("v_mov_b64 v[4:5], 0")
    a("s_waitcnt vmcnt(0)")
    ts(7)
    row_reduce(QS)
    a("v_cvt_pk_bf16_f32 v4, v4, v5")
    check("G5")
    a(f"ds_write_b32 v27, v4 offset:{L_Q}")
    ts(8)
    if P["dry"]:
        a("s_cbranch_execz FINAL")
    flush("lay")
    bump([S_GAT])
    a(f"s_mov_b32 {S_LAY}, 1")
    a("s_branch ATT")
    a("FINAL:")
    a(f"buffer_store_dword v8, v31, {R_OUT}, {S_XO} offen")
    if P["dry"]:
        a("s_cbranch_execz DRY_END")
    if P["prof"]:
        a("s_waitcnt vmcnt(0)")
        ts(5)
        flush("lay")
    a("s_endpgm")

    a("NOT0:")
    a("s_cmp_eq_u32 s3, 1")
    a("s_cbranch_scc1 ST1")
    a("s_cmp_eq_u32 s3, 2")
    a("s_cbranch_scc1 ST2")
    a(f"s_cmp_eq_u32 {S_LAY}, 0")
    a("s_cbranch_scc1 NOT0_A")
    a("s_cmp_eq_u32 s3, 3")
    a(f"s_cselect_b32 s60, s5, 63")
    a(f"s_cmp_eq_u32 s60, {P['final_team']}")
    a("s_cbranch_scc1 ST3")
    flush("lay")
    a("s_endpgm")
    a("NOT0_A:")
    a("s_cmp_eq_u32 s3, 3")
    a("s_cbranch_scc1 ST3")
    a("s_barrier")
    a("END0:")
    flush("lay")
    a(f"s_cmp_eq_u32 {S_LAY}, 1")
    a("s_cbranch_scc1 END")
    a("s_barrier")
    a("s_barrier")
    next_layer([S_PUBD, S_PUBS, S_ROWD, S_ROWS, S_PUBC])
    a("END1:")
    flush("lay")
    a(f"s_cmp_eq_u32 {S_LAY}, 1")
    a("s_cbranch_scc1 END")
    a("s_barrier")
    next_layer([S_GAT, S_PUBD, S_PUBS])
    a("END2:")
    flush("lay")
    a(f"s_cmp_eq_u32 {S_LAY}, 1")
    a("s_cbranch_scc1 END")
    next_layer([S_ROWD, S_ROWS, S_PUBC])

    a("VT:")
    a("s_cmp_eq_u32 s3, 3")
    a("s_cbranch_scc0 VT_V")
    a(f"buffer_load_dword v6, v3, {R_DBG}, 0 offen sc1")
    a("VT_V:")
    for i in range(8, 16):
        v_load(i, ACC)
    ts(8)
    for gi in range(4):
        a(f"s_waitcnt vmcnt({12-4*gi})")
        quad_transpose(V, ACC, gi >> 1, gi & 1, True)
        if gi >= 2:
            for r in range(ACC + 16 * (gi - 2), ACC + 16 * (gi - 1), 2):
                a(f"v_mov_b32 v{r}, 0")
    a("s_branch PV")

    a("WL:")
    a("s_cmp_eq_u32 s3, 1")
    a("s_cbranch_scc1 WL1")
    a("s_cmp_eq_u32 s3, 2")
    a("s_cbranch_scc1 WL2")
    a("s_cmp_eq_u32 s3, 3")
    a("s_cbranch_scc1 FL_chk")
    pair_loads(8, lambda m: R_WO, lambda m, hi, e: ((64 * m + 32 * hi + (e & 4)) * 1024, (e & 3) * 1024))
    a("s_branch B2")
    a("WL1:")
    pair_loads(8, lambda m: (R_WG, R_WU)[m],
               lambda m, hi, e: ((16 * (e >> 2) + 8 * ((e >> 1) & 1) + 4 * hi) * 2752, (e & 1) * 2752))
    a("s_branch B2")
    a("WL2:")
    pair_loads(4, lambda m: R_WD, lambda m, hi, e: (e * 4096, hi * 2048))
    a("s_branch B2")

    a(f"""
    FL_retry:
    s_sub_u32 {S_RETRY}, {S_RETRY}, 1
    s_cbranch_scc0 FL_loop
    s_mov_b32 {S_RETRY}, 0
    s_branch FL_ok
    FL_loop:
    buffer_load_dword v6, v3, {R_DBG}, 0 offen sc1
    FL_chk:
    s_getreg_b32 s61, hwreg(HW_REG_XCC_ID)
    s_and_b32 s61, s61, 15
    s_or_b32 s61, s61, 0x80
    s_mul_i32 s61, s61, 0x01010101
    s_waitcnt vmcnt(0)
    v_and_b32 v5, 0x80808080, v6
    v_cmp_ne_u32 vcc, 0x80808080, v5
    {"" if P["noclr"] else "s_cbranch_vccnz FL_retry"}
    FL_ok:
    v_cmp_eq_u32 vcc, s61, v6
    s_lshl_b32 s61, s5, 1
    s_mov_b32 {S_WL}, 0
    s_mov_b32 {S_VT}, 0
    v_mov_b32 v5, {L_FAST}
    s_lshr_b64 vcc, vcc, s61
    s_and_b32 s61, vcc_lo, 3
    s_cmp_eq_u32 s61, 3
    s_cselect_b32 {S_FAST}, 1, 0
    v_mov_b32 v4, {S_FAST}
    ds_write_b32 v5, v4
    s_branch B2
    """)

    a("CLEAR:")
    if P["prio"]:
        a("s_setprio 3")
    a(f"""
    v_mov_b32 v8, -1
    v_mov_b32 v9, -1
    v_mov_b32 v10, -1
    v_mov_b32 v11, -1
    v_lshlrev_b32 v14, 17, v5
    v_lshl_add_u32 v15, v4, 4, v14
    v_lshl_add_u32 v14, v4, 3, v14
    v_lshlrev_b32 v16, 17, v6
    s_lshl_b32 s60, s4, 8
    buffer_store_dwordx4 v[8:11], v15, {R_WS}, s60 offen sc1
    s_add_u32 s60, s60, {4*REG}
    buffer_store_dwordx4 v[8:11], v15, {R_WS}, s60 offen sc1
    s_lshl_b32 s60, s6, 12
    s_lshl_b32 s61, s5, 7
    s_add_u32 s60, s60, s61
    s_add_u32 s60, s60, {COL}
    buffer_store_dwordx2 v[8:9], v14, {R_WS}, s60 offen sc1
    s_lshl_b32 s60, s4, 7
    s_add_u32 s60, s60, {STAT}
    s_mov_b64 exec, 0xff
    buffer_store_dwordx2 v[8:9], v16, {R_WS}, s60 offen sc1
    s_getreg_b32 s61, hwreg(HW_REG_XCC_ID)
    s_and_b32 s61, s61, 15
    s_or_b32 s61, s61, 0x80
    v_mov_b32 v16, s61
    s_mov_b64 exec, 1
    s_waitcnt vmcnt(0)
    buffer_store_byte v16, v25, {R_DBG}, s4 offen sc1
    s_mov_b64 exec, -1
    s_branch LOADS
    """)
    a("END:")

    pads = a.resolve()
    ref = open(f"{KDIR}/{NAME}.s.ref").read().split("\n")
    head = [l for l in ref[:ref.index(".text")] if not l.startswith("; @launch") and not l.startswith(".amdgcn")]
    tail = ref[ref.index("s_endpgm"):]
    out = head + [f"; @launch grid=(256,1,1) block=(512,1,1) lds={L_SIZE}",
                  '.amdgcn_target "amdgcn-amd-amdhsa--gfx950"', ".text", f".globl {NAME}_kernel", ".p2align 8",
                  f".type {NAME}_kernel,@function", f"{NAME}_kernel:", a.text()] + tail
    return "\n".join(out), pads, len(a.ins)


if __name__ == "__main__":
    kw = {}
    dst = f"{KDIR}/{NAME}.s"
    for x in sys.argv[1:]:
        k, v = x.split("=")
        if k == "out":
            dst = v
        else:
            kw[k] = eval(v)
    txt, pads, n = build(**kw)
    open(dst, "w").write(txt)
    print(f"wrote {dst}: {n} lines, {pads} pad states")
```
